```python
import torch

def _softmax(x, axis=-1):
    return torch.softmax(x, dim=axis)

def _gelu(x):
    return torch.nn.functional.gelu(x, approximate='tanh')

def _silu(x):
    return torch.nn.functional.silu(x)

def _sigmoid(x):
    return torch.sigmoid(x)

def _layernorm(x, axis=-1, eps=1e-05):
    m = x.mean(dim=axis, keepdim=True)
    v = x.var(dim=axis, keepdim=True, unbiased=False)
    return (x - m) / torch.sqrt(v + eps)

def _scatter_add(tgt, idx, src, axis=0):
    return tgt.clone().index_add_(axis, idx, src)

def _segment_sum(src, seg, n):
    out = torch.zeros((n,) + src.shape[1:], dtype=src.dtype)
    return out.index_add_(0, seg, src)

def _pad(x, pw):
    flat = tuple((v for pair in reversed(pw) for v in pair))
    return torch.nn.functional.pad(x, flat)
kernel_name = 'parallel_sum__memory_aug_recurrent_mem_tr__glu_gated_reglu__prompt'

def setup_inputs():

    _w = lambda a: (lambda t: t.to(torch.bfloat16) if t.is_floating_point() else t)(torch.as_tensor(a))

    def _A_setup():
        B, S, Dm = (1, 2048, 640)
        H, Dh = (32, 192)
        M, seg = (8, 32)
        seg = min(seg, S)
        S = S // seg * seg
        return {'x': _w((lambda *s: torch.randn(*s, dtype=torch.bfloat16) * 0.05)(B, S, Dm)), 'mem0': _w((lambda *s: torch.randn(*s, dtype=torch.bfloat16) * 0.2)(B, M, Dm)), 'Wq': _w((lambda *s: torch.randn(*s, dtype=torch.bfloat16) * 1.6)(Dm, H, Dh) * Dm ** (-0.5)), 'Wk': _w((lambda *s: torch.randn(*s, dtype=torch.bfloat16) * 1.6)(Dm, H, Dh) * Dm ** (-0.5)), 'Wv': _w((lambda *s: torch.randn(*s, dtype=torch.bfloat16) * 0.2)(Dm, H, Dh) * Dm ** (-0.5)), 'Wo': _w((lambda *s: torch.randn(*s, dtype=torch.bfloat16) * 0.2)(H, Dh, Dm) * (H * Dh) ** (-0.5)), 'seg_len': seg}
    _A_in = _A_setup()

    def _B_setup():
        B, S, D, F = (1, 2048, 640, 1536)
        return {'x': _w((lambda *s: torch.randn(*s, dtype=torch.bfloat16) * 0.05)(B, S, D)), 'W_gate': _w((lambda *s: torch.randn(*s, dtype=torch.bfloat16) * 0.2)(D, F) * (2.0 / D) ** 0.5), 'W_up': _w((lambda *s: torch.randn(*s, dtype=torch.bfloat16) * 0.2)(D, F) * (2.0 / D) ** 0.5), 'W_down': _w((lambda *s: torch.randn(*s, dtype=torch.bfloat16) * 0.2)(F, D) * (1.0 / F) ** 0.5)}
    _B_in = _B_setup()
    return {'A_x': _A_in['x'], 'A_mem0': _A_in['mem0'], 'A_Wq': _A_in['Wq'], 'A_Wk': _A_in['Wk'], 'A_Wv': _A_in['Wv'], 'A_Wo': _A_in['Wo'], 'A_seg_len': _A_in['seg_len'], 'B_x': _B_in['x'], 'B_W_gate': _B_in['W_gate'], 'B_W_up': _B_in['W_up'], 'B_W_down': _B_in['W_down']}

def reference(A_x, A_mem0, A_Wq, A_Wk, A_Wv, A_Wo, A_seg_len, B_x, B_W_gate, B_W_up, B_W_down):

    def _A_ref(x, mem0, Wq, Wk, Wv, Wo, seg_len):
        B, S, Dm = x.shape
        H, Dh = (Wq.shape[1], Wq.shape[2])
        M = mem0.shape[1]
        scale = Dh ** (-0.5)
        n_seg = S // seg_len
        L = M + seg_len
        idx = torch.arange(L)
        mask = (idx[:, None] < M) | (idx[:, None] >= idx[None, :])
        mem = mem0
        outs = []
        for s in range(n_seg):
            xs = x[:, s * seg_len:(s + 1) * seg_len, :].clone()
            h = torch.concatenate([mem, xs], axis=1)
            q = torch.einsum('btd,dhe->bhte', h, Wq)
            k = torch.einsum('btd,dhe->bhte', h, Wk)
            v = torch.einsum('btd,dhe->bhte', h, Wv)
            scores = torch.einsum('bhqe,bhke->bhqk', q, k) * scale
            scores = torch.where(mask[None, None], scores, -1000000000.0)
            p = _softmax(scores, axis=-1)
            o = torch.einsum('bhqk,bhke->bhqe', p, v)
            o = torch.einsum('bhte,hed->btd', o, Wo)
            mem = o[:, :M, :].clone()
            outs.append(o[:, M:, :])
        return torch.concatenate(outs, axis=1)

    def _B_ref(x, W_gate, W_up, W_down):
        gate = torch.einsum('bsd,df->bsf', x, W_gate)
        up = torch.einsum('bsd,df->bsf', x, W_up)
        gate = gate * (lambda x, dt: x.to(dt))(gate > 0, gate.dtype)
        h = gate * up
        return torch.einsum('bsf,fd->bsd', h, W_down)
    x = A_x
    xn = _layernorm(x, axis=-1)
    return x + _A_ref(xn, A_mem0, A_Wq, A_Wk, A_Wv, A_Wo, A_seg_len) + _B_ref(xn, B_W_gate, B_W_up, B_W_down)
```

```python
class Asm:
    def __init__(self):
        self.lines = []
    def __call__(self, s):
        for l in s.strip('\n').split('\n'):
            l = l.strip()
            if l:
                self.lines.append('    ' + l)
    def label(self, l):
        self.lines.append(l + ':')
    def raw(self, s):
        self.lines.append(s)
    def text(self):
        return '\n'.join(self.lines) + '\n'

S, DM, H, DH, MM, SEG, FF = 2048, 640, 32, 192, 8, 32, 1536
HD = H * DH
NSEG = S // SEG
WS_BYTES = 268435456

KA_X, KA_MEM0, KA_WQ, KA_WK, KA_WV, KA_WO, KA_SEG, KA_BX, KA_WG, KA_WU, KA_WD, KA_OUT, KA_DBG, KA_WS = \
    0, 8, 16, 24, 32, 40, 48, 56, 64, 72, 80, 88, 96, 104

def _al(x, a=4096):
    return (x + a - 1) // a * a
off = 0
XN_OFF = off;   off = _al(off + S * DM * 2)
QX_OFF = off;   off = _al(off + S * HD * 2)
KX_OFF = off;   off = _al(off + S * HD * 2)
VF_OFF = off;   off = _al(off + S * HD * 2)
H_OFF = off;    off = _al(off + S * FF * 2)
BO_OFF = off;   off = _al(off + S * DM * 2)
O_OFF = off;    off = _al(off + S * HD * 2)
KVM_OFF = off;  off = _al(off + NSEG * H * 6144)
PART_OFF = off; off = _al(off + 4 * S * DM * 4)
RING_OFF = off
MEMR_OFF = RING_OFF
MEMR_STRIDE = 16384
QKVR_OFF = RING_OFF + 65536
QKVR_STRIDE = 32 * 9216
PR_OFF = QKVR_OFF + 4 * QKVR_STRIDE
PR_STRIDE = 80 * 8192
RING_END = PR_OFF + 4 * PR_STRIDE
off = _al(RING_END)
WS_USED = off
assert WS_USED < WS_BYTES

def srd(a, d, blo, size, off=0):
    if off:
        a(f's_add_u32 s{d}, s{blo}, {off:#x}')
        a(f's_addc_u32 s{d+1}, s{blo+1}, 0')
    else:
        a(f's_mov_b32 s{d}, s{blo}')
        a(f's_mov_b32 s{d+1}, s{blo+1}')
    a(f's_mov_b32 s{d+2}, {size:#x}')
    a(f's_mov_b32 s{d+3}, 0x20000')

def kernel_header(a, name):
    a.raw(f'.globl {name}')
    a.raw('.p2align 8')
    a.raw(f'.type {name},@function')
    a.label(name)

def kernel_desc(name, vgpr, sgpr=102, accum=None):
    if accum is None:
        accum = (min(vgpr, 256) + 3) // 4 * 4
    return f""".amdhsa_kernel {name}
  .amdhsa_next_free_vgpr {vgpr}
  .amdhsa_next_free_sgpr {sgpr}
  .amdhsa_accum_offset {accum}
  .amdhsa_group_segment_fixed_size 0
  .amdhsa_kernarg_size 112
  .amdhsa_user_sgpr_count 2
  .amdhsa_user_sgpr_kernarg_segment_ptr 1
  .amdhsa_system_sgpr_workgroup_id_x 1
.end_amdhsa_kernel
"""

def bf16r(a, dst, src, tmp=None):
    a(f'v_cvt_pk_bf16_f32 v{dst}, v{src}, v{src}')
    a(f'v_lshlrev_b32 v{dst}, 16, v{dst}')
```

```python
from common import *
LOG2E = 1.4426950408889634
SCALE = 192 ** -0.5

def xgroup_reduce(a, x, tmp, op):
    a(f'v_mov_b32 v{tmp}, v{x}')
    a('s_nop 1')
    a(f'v_permlane32_swap_b32 v{x}, v{tmp}')
    a('s_nop 1')
    a(f'{op} v{x}, v{x}, v{tmp}')
    a(f'v_mov_b32 v{tmp}, v{x}')
    a('s_nop 1')
    a(f'v_permlane16_swap_b32 v{x}, v{tmp}')
    a('s_nop 1')
    a(f'{op} v{x}, v{x}, v{tmp}')

def softmax_block(a, regs, masks, sc_s, t0, t1, t2):
    for r in regs:
        bf16r(a, r, r)
        a(f'v_mul_f32 v{r}, s{sc_s}, v{r}')
        bf16r(a, r, r)
        if masks.get(r) is not None:
            a(f'v_cndmask_b32 v{r}, v{t2}, v{r}, {masks[r]}')
    a(f'v_max_f32 v{t0}, v{regs[0]}, v{regs[1]}')
    for r in regs[2:]:
        a(f'v_max_f32 v{t0}, v{t0}, v{r}')
    xgroup_reduce(a, t0, t1, 'v_max_f32')
    for r in regs:
        a(f'v_sub_f32 v{r}, v{r}, v{t0}')
        a(f'v_mul_f32 v{r}, {LOG2E!r}, v{r}')
    for r in regs:
        a(f'v_exp_f32 v{r}, v{r}')
    a('s_nop 0')
    a(f'v_add_f32 v{t0}, v{regs[0]}, v{regs[1]}')
    for r in regs[2:]:
        a(f'v_add_f32 v{t0}, v{t0}, v{r}')
    xgroup_reduce(a, t0, t1, 'v_add_f32')
    a(f'v_rcp_f32 v{t0}, v{t0}')
    a('s_nop 0')
    for r in regs:
        a(f'v_mul_f32 v{r}, v{r}, v{t0}')

def gen_attn(a):
    name = 'attn_kernel'
    kernel_header(a, name)
    NWG = 512
    a(f"""
    s_cmp_ge_u32 s2, {NWG}
    s_cbranch_scc1 L_at_done
    s_load_dwordx2 s[4:5], s[0:1], {KA_WS}
    v_lshrrev_b32 v1, 6, v0
    v_and_b32 v2, 63, v0
    s_nop 0
    v_readfirstlane_b32 s40, v1
    s_waitcnt lgkmcnt(0)
    """)
    srd(a, 12, 4, S * HD * 2, QX_OFF)
    srd(a, 16, 4, S * HD * 2, KX_OFF)
    srd(a, 20, 4, S * HD * 2, VF_OFF)
    srd(a, 24, 4, NSEG * H * 6144, KVM_OFF)
    srd(a, 28, 4, S * HD * 2, O_OFF)
    QF, KX, KM, VX, VM = 32, 80, 128, 152, 200
    SA = 224
    OA = 32
    PF = 80
    a(f"""
    s_lshr_b32 s41, s2, 3              ; seg
    s_and_b32 s42, s2, 7
    s_lshl_b32 s42, s42, 2
    s_add_u32 s42, s42, s40            ; head
    v_and_b32 v3, 15, v2               ; l&15
    v_lshrrev_b32 v4, 4, v2            ; g
    s_lshl_b32 s43, s41, 5
    v_add_u32 v5, s43, v3
    s_mov_b32 s60, 12288
    v_mul_lo_u32 v5, v5, s60
    s_mul_i32 s43, s42, 384
    v_add_u32 v5, s43, v5
    v_lshl_add_u32 v5, v4, 4, v5
    v_add_u32 v6, {16*12288:#x}, v5    ; tile1
    s_lshl_b32 s43, s41, 5
    s_add_u32 s43, s43, s42
    s_mul_i32 s44, s43, 6144
    v_and_b32 v7, 7, v2
    v_lshl_add_u32 v7, v4, 3, v7
    v_lshlrev_b32 v7, 4, v7
    v_add_u32 v7, s44, v7
    v_and_b32 v8, 1, v4
    v_lshlrev_b32 v8, 3, v8
    v_lshl_add_u32 v8, v3, 4, v8
    v_add_u32 v8, s44, v8
    v_add_u32 v8, 3072, v8
    s_mul_i32 s43, s41, 384
    s_mul_i32 s45, s42, 12
    s_add_u32 s43, s43, s45
    s_lshl_b32 s43, s43, 10
    v_lshlrev_b32 v9, 4, v2
    v_add_u32 v9, s43, v9
    v_add_u32 v10, 4096, v9
    v_add_u32 v11, 8192, v9
    """)
    for qt in range(2):
        for ks in range(6):
            r = QF + (qt * 6 + ks) * 4
            a(f'buffer_load_dwordx4 v[{r}:{r+3}], v{5+qt}, s[12:15], 0 offen offset:{ks*64}')
    for kt in range(2):
        for ks in range(6):
            r = KX + (kt * 6 + ks) * 4
            a(f'buffer_load_dwordx4 v[{r}:{r+3}], v{5+kt}, s[16:19], 0 offen offset:{ks*64}')
    for ks in range(6):
        r = KM + ks * 4
        a(f'buffer_load_dwordx4 v[{r}:{r+3}], v7, s[24:27], 0 offen offset:{ks*512}')
    for t in range(12):
        r = VX + t * 4
        a(f'buffer_load_dwordx4 v[{r}:{r+3}], v{9 + t//4}, s[20:23], 0 offen offset:{(t%4)*1024}')
    for t in range(12):
        r = VM + t * 2
        a(f'buffer_load_dwordx2 v[{r}:{r+1}], v8, s[24:27], 0 offen offset:{t*256}')
    a('v_cmp_gt_u32 s[46:47], 2, v4')
    for r in range(4):
        a(f'v_lshl_add_u32 v12, v4, 2, {r}')
        a(f'v_cmp_le_u32 s[{48+2*r}:{49+2*r}], v12, v3')
    a(f's_mov_b32 s56, {SCALE!r}')
    a('v_mov_b32 v13, 0xce6e6b28')
    for r in range(SA, SA + 24):
        a(f'v_mov_b32 v{r}, 0')
    a('s_waitcnt vmcnt(24)')
    for qt in range(2):
        for ks in range(6):
            q = QF + (qt * 6 + ks) * 4
            b = SA + 12 * qt
            a(f'v_mfma_f32_16x16x32_bf16 v[{b}:{b+3}], v[{KM+4*ks}:{KM+4*ks+3}], v[{q}:{q+3}], v[{b}:{b+3}]')
            k0 = KX + ks * 4
            a(f'v_mfma_f32_16x16x32_bf16 v[{b+4}:{b+7}], v[{k0}:{k0+3}], v[{q}:{q+3}], v[{b+4}:{b+7}]')
            if qt == 1:
                k1 = KX + (6 + ks) * 4
                a(f'v_mfma_f32_16x16x32_bf16 v[{b+8}:{b+11}], v[{k1}:{k1+3}], v[{q}:{q+3}], v[{b+8}:{b+11}]')
    a('s_nop 7')
    a('s_nop 1')
    for qt in range(2):
        b = SA + 12 * qt
        regs = list(range(b, b + (8 if qt == 0 else 12)))
        masks = {b + r: 's[46:47]' for r in range(4)}
        d = b + 4 if qt == 0 else b + 8
        for r in range(4):
            masks[d + r] = f's[{48+2*r}:{49+2*r}]'
        softmax_block(a, regs, masks, 56, 14, 15, 13)
        p = PF + 6 * qt
        a(f'v_cvt_pk_bf16_f32 v{p}, v{b+4}, v{b+5}')
        a(f'v_cvt_pk_bf16_f32 v{p+1}, v{b+6}, v{b+7}')
        if qt == 1:
            a(f'v_cvt_pk_bf16_f32 v{p+2}, v{b+8}, v{b+9}')
            a(f'v_cvt_pk_bf16_f32 v{p+3}, v{b+10}, v{b+11}')
        else:
            a(f'v_mov_b32 v{p+2}, 0')
            a(f'v_mov_b32 v{p+3}, 0')
        a(f'v_cvt_pk_bf16_f32 v{p+4}, v{b}, v{b+1}')
        a(f'v_cvt_pk_bf16_f32 v{p+5}, v{b+2}, v{b+3}')
    a('s_waitcnt vmcnt(0)')
    a("""
    v_lshlrev_b32 v16, 3, v4
    v_sub_u32 v17, v5, v16
    v_sub_u32 v18, v6, v16
    """)
    for qt in range(2):
        p = PF + 6 * qt
        for t in range(12):
            o = OA + 4 * t
            for r in range(4):
                a(f'v_mov_b32 v{o+r}, 0')
        a('s_nop 1')
        for t in range(12):
            o = OA + 4 * t
            a(f'v_mfma_f32_16x16x32_bf16 v[{o}:{o+3}], v[{VX+4*t}:{VX+4*t+3}], v[{p}:{p+3}], v[{o}:{o+3}]')
        for t in range(12):
            o = OA + 4 * t
            a(f'v_mfma_f32_16x16x16_bf16 v[{o}:{o+3}], v[{VM+2*t}:{VM+2*t+1}], v[{p+4}:{p+5}], v[{o}:{o+3}]')
        a('s_nop 7')
        a('s_nop 1')
        for t in range(12):
            o = OA + 4 * t
            tt = 24 + 2 * (t % 4)
            a(f'v_cvt_pk_bf16_f32 v{tt}, v{o}, v{o+1}')
            a(f'v_cvt_pk_bf16_f32 v{tt+1}, v{o+2}, v{o+3}')
            a(f'buffer_store_dwordx2 v[{tt}:{tt+1}], v{17+qt}, s[28:31], 0 offen offset:{t*32}')
        a('s_nop 1')
    a.label('L_at_done')
    a('s_endpgm')
    return name, kernel_desc(name, 248), (NWG, 256, 0)

def gen_final(a):
    name = 'fin_kernel'
    kernel_header(a, name)
    NWG = S * DM // 8 // 256
    a(f"""
    s_cmp_ge_u32 s2, {NWG}
    s_cbranch_scc1 L_fin_done
    s_load_dwordx2 s[4:5], s[0:1], {KA_WS}
    s_load_dwordx2 s[6:7], s[0:1], {KA_X}
    s_load_dwordx2 s[8:9], s[0:1], {KA_OUT}
    s_waitcnt lgkmcnt(0)
    """)
    srd(a, 12, 6, S * DM * 2)
    srd(a, 16, 4, S * DM * 2, BO_OFF)
    srd(a, 20, 4, 3 * S * DM * 4, PART_OFF)
    srd(a, 24, 8, S * DM * 2)
    a(f"""
    s_lshl_b32 s3, s2, 8
    v_add_u32 v1, s3, v0
    v_lshlrev_b32 v2, 4, v1
    v_lshlrev_b32 v3, 5, v1
    v_add_u32 v4, {S*DM*4:#x}, v3
    v_add_u32 v5, {2*S*DM*4:#x}, v3
    buffer_load_dwordx4 v[8:11], v2, s[12:15], 0 offen
    buffer_load_dwordx4 v[12:15], v2, s[16:19], 0 offen
    buffer_load_dwordx4 v[16:19], v3, s[20:23], 0 offen
    buffer_load_dwordx4 v[20:23], v3, s[20:23], 0 offen offset:16
    buffer_load_dwordx4 v[24:27], v4, s[20:23], 0 offen
    buffer_load_dwordx4 v[28:31], v4, s[20:23], 0 offen offset:16
    buffer_load_dwordx4 v[32:35], v5, s[20:23], 0 offen
    buffer_load_dwordx4 v[36:39], v5, s[20:23], 0 offen offset:16
    s_waitcnt vmcnt(0)
    """)
    for i in range(8):
        a(f'v_add_f32 v{16+i}, v{16+i}, v{24+i}')
        a(f'v_add_f32 v{16+i}, v{16+i}, v{32+i}')
        bf16r(a, 16 + i, 16 + i)
        if i % 2 == 0:
            a(f'v_lshlrev_b32 v40, 16, v{8+i//2}')
            a(f'v_lshlrev_b32 v41, 16, v{12+i//2}')
        else:
            a(f'v_and_b32 v40, 0xffff0000, v{8+i//2}')
            a(f'v_and_b32 v41, 0xffff0000, v{12+i//2}')
        a(f'v_add_f32 v{16+i}, v40, v{16+i}')
        bf16r(a, 16 + i, 16 + i)
        a(f'v_add_f32 v{16+i}, v{16+i}, v41')
    for i in range(4):
        a(f'v_cvt_pk_bf16_f32 v{44+i}, v{16+2*i}, v{17+2*i}')
    a('buffer_store_dwordx4 v[44:47], v2, s[24:27], 0 offen')
    a.label('L_fin_done')
    a('s_endpgm')
    return name, kernel_desc(name, 48), (NWG, 256, 0)
```

```python
from common import *
from k_attn import softmax_block, xgroup_reduce, SCALE

SPIN_MAX = 1 << 18

def gen_chain(a):
    name = 'chain_kernel'
    kernel_header(a, name)
    NWG = 128
    MEMF = 32
    ACC1 = 52
    OACC = 32
    KXF = 88
    VXF = 136
    QF = 184
    KMF = 208
    VMF = 232
    SACC = 184
    SACC = 76
    OF = 184
    PF = 208
    PACC = 216
    TMP = 24
    AW1 = 0
    AWO = 180
    LDS_PART = 0
    LDS_SHARE = 36864
    LDS_BYTES = LDS_SHARE + 9216
    a(f"""
    s_cmp_ge_u32 s2, {NWG}
    s_cbranch_scc1 L_ch_done
    s_load_dwordx2 s[4:5], s[0:1], {KA_WS}
    s_load_dwordx2 s[6:7], s[0:1], {KA_WQ}
    s_load_dwordx2 s[8:9], s[0:1], {KA_WK}
    s_load_dwordx2 s[10:11], s[0:1], {KA_WV}
    s_load_dwordx2 s[12:13], s[0:1], {KA_WO}
    v_lshrrev_b32 v1, 6, v0
    v_and_b32 v2, 63, v0
    s_nop 0
    v_readfirstlane_b32 s40, v1        ; wave
    s_lshr_b32 s41, s2, 2              ; head
    s_and_b32 s42, s2, 3
    s_waitcnt lgkmcnt(0)
    """)
    srd(a, 16, 4, 4 * MEMR_STRIDE, MEMR_OFF)
    srd(a, 20, 4, 4 * QKVR_STRIDE, QKVR_OFF)
    srd(a, 24, 4, 4 * PR_STRIDE, PR_OFF)
    srd(a, 28, 4, NSEG * H * 6144, KVM_OFF)
    srd(a, 32, 4, S * HD * 2, KX_OFF)
    srd(a, 36, 4, S * HD * 2, VF_OFF)
    a(f"""
    v_and_b32 v3, 15, v2               ; l&15
    v_lshrrev_b32 v4, 4, v2            ; g4
    v_and_b32 v5, 7, v2                ; l&7
    """)
    a(f"""
    v_lshrrev_b32 v6, 1, v2            ; row 0..31
    v_and_b32 v7, 1, v2
    s_mul_i32 s43, s40, 160
    v_add_u32 v8, s43, v6
    s_mov_b32 s60, {HD*2}
    v_mul_lo_u32 v8, v8, s60
    v_lshl_add_u32 v8, v7, 4, v8
    s_mul_i32 s43, s40, 9216
    v_lshlrev_b32 v9, 4, v2
    v_add_u32 v9, s43, v9
    v_lshrrev_b32 v10, 2, v3           ; r
    v_and_b32 v11, 3, v2               ; c
    v_lshl_add_u32 v12, v4, 3, v10     ; 8g + r
    v_lshlrev_b32 v12, 5, v12
    v_lshl_add_u32 v12, v11, 3, v12
    v_add_u32 v12, s43, v12
    v_lshl_add_u32 v13, v4, 2, v10     ; 4g + r
    v_lshlrev_b32 v13, 5, v13
    v_lshl_add_u32 v13, v11, 3, v13
    v_add_u32 v13, s43, v13
    s_mov_b32 s46, {DM*HD*2:#x}
    s_mov_b32 s47, 0x20000
    """)
    STG = 32
    for ks in range(5):
        for t in range(9):
            a(f"""
            s_mul_i32 s48, s42, 9
            s_add_u32 s48, s48, {t}
            s_cmp_ge_u32 s48, 12
            s_cselect_b32 s44, s8, s6
            s_cselect_b32 s45, s9, s7
            s_cselect_b32 s49, 12, 0
            s_cmp_ge_u32 s48, 24
            s_cselect_b32 s44, s10, s44
            s_cselect_b32 s45, s11, s45
            s_cselect_b32 s49, 24, s49
            s_sub_u32 s48, s48, s49
            s_lshl_b32 s48, s48, 5             ; *32 bytes
            s_mul_i32 s49, s41, 384
            s_add_u32 s48, s48, s49
            s_add_u32 s48, s48, {ks*32*HD*2:#x}
            buffer_load_dwordx4 v[{STG+4*t}:{STG+4*t+3}], v8, s[44:47], s48 offen
            """)
        a('s_waitcnt vmcnt(0)')
        for t in range(9):
            a(f'ds_write_b128 v9, v[{STG+4*t}:{STG+4*t+3}] offset:{t*1024}')
        a('s_waitcnt lgkmcnt(0)')
        for t in range(9):
            a(f'ds_read_b64_tr_b16 v[{STG+4*t}:{STG+4*t+1}], v12 offset:{t*1024}')
            a(f'ds_read_b64_tr_b16 v[{STG+4*t+2}:{STG+4*t+3}], v12 offset:{t*1024+128}')
        a('s_waitcnt lgkmcnt(0)')
        for t in range(9):
            for r in range(4):
                a(f'v_accvgpr_write_b32 a{AW1+(t*5+ks)*4+r}, v{STG+4*t+r}')
    a(f"""
    s_mul_i32 s50, s40, 3
    s_cmp_eq_u32 s40, 3
    s_cselect_b32 s50, 8, s50
    s_mul_i32 s48, s41, 192
    v_add_u32 v8, s48, v6
    v_mul_u32_u24 v8, {DM*2}, v8
    v_lshl_add_u32 v8, v7, 4, v8
    s_mov_b32 s44, s12
    s_mov_b32 s45, s13
    s_mov_b32 s46, {HD*DM*2:#x}
    """)
    for half in range(2):
        items = [(tt, ks2) for tt in range(3) for ks2 in range(6)][half*9:(half+1)*9]
        for i, (tt, ks2) in enumerate(items):
            a(f"""
            s_add_u32 s48, s50, {tt}
            s_min_u32 s48, s48, 9
            s_lshl_b32 s48, s48, 5
            s_mul_i32 s49, s42, 320
            s_add_u32 s48, s48, s49
            s_add_u32 s48, s48, {ks2*32*DM*2}
            buffer_load_dwordx4 v[{STG+4*i}:{STG+4*i+3}], v8, s[44:47], s48 offen
            """)
        a('s_waitcnt vmcnt(0)')
        for i in range(9):
            a(f'ds_write_b128 v9, v[{STG+4*i}:{STG+4*i+3}] offset:{i*1024}')
        a('s_waitcnt lgkmcnt(0)')
        for i in range(9):
            a(f'ds_read_b64_tr_b16 v[{STG+4*i}:{STG+4*i+1}], v13 offset:{i*1024}')
            a(f'ds_read_b64_tr_b16 v[{STG+4*i+2}:{STG+4*i+3}], v13 offset:{i*1024+512}')
        a('s_waitcnt lgkmcnt(0)')
        for i, (tt, ks2) in enumerate(items):
            for r in range(4):
                a(f'v_accvgpr_write_b32 a{AWO+(tt*6+ks2)*4+r}, v{STG+4*i+r}')
    a(f"""
    v_lshl_add_u32 v6, v4, 3, v5
    v_lshlrev_b32 v6, 4, v6
    v_mov_b32 v7, v6
    s_mul_i32 s43, s40, 2560
    v_add_u32 v6, s43, v6
    v_add_u32 v7, {LDS_SHARE}, v7
    v_mov_b32 v8, v9
    v_lshrrev_b32 v10, 4, v0           ; t
    v_and_b32 v11, 15, v0              ; i
    s_mul_i32 s43, s42, 9
    v_add_u32 v12, s43, v10            ; T global
    v_lshrrev_b32 v13, 3, v11
    v_lshlrev_b32 v13, 5, v13
    v_and_b32 v14, 7, v11
    v_add_u32 v13, v13, v14            ; T-form l1
    v_cmp_le_u32 vcc, 24, v12
    s_nop 1
    v_cndmask_b32 v13, v13, v11, vcc
    v_lshlrev_b32 v13, 4, v13
    v_lshl_add_u32 v9, v10, 10, v13
    s_mul_i32 s43, s41, 9216
    s_mul_i32 s48, s42, 2304
    s_add_u32 s43, s43, s48
    v_lshlrev_b32 v10, 4, v0
    v_add_u32 v10, s43, v10
    s_mul_i32 s43, s41, 6144
    s_add_u32 s43, s43, s48
    s_sub_u32 s43, s43, 3072
    v_lshlrev_b32 v11, 4, v0
    v_add_u32 v11, s43, v11
    v_cmp_gt_u32 vcc, 144, v0
    s_mov_b64 s[52:53], vcc
    v_cmp_le_u32 vcc, 12, v12
    s_and_b64 s[54:55], vcc, s[52:53]
    s_mul_i32 s43, s41, 9216
    s_mul_i32 s48, s40, 2304
    s_add_u32 s43, s43, s48
    v_lshlrev_b32 v12, 4, v2
    v_min_u32 v13, 15, v2
    v_lshlrev_b32 v13, 4, v13
    v_add_u32 v13, 2048, v13
    v_add_u32 v15, s48, v12
    v_add_u32 v15, {LDS_SHARE}, v15
    v_add_u32 v16, s48, v13
    v_add_u32 v16, {LDS_SHARE}, v16
    v_add_u32 v12, s43, v12
    v_add_u32 v13, s43, v13
    v_and_b32 v14, 1, v4
    v_lshlrev_b32 v14, 3, v14
    v_lshl_add_u32 v14, v3, 4, v14
    v_add_u32 v14, {LDS_SHARE+6144}, v14
    s_mul_i32 s43, s42, 20
    s_lshl_b32 s48, s50, 1
    s_add_u32 s43, s43, s48
    v_lshrrev_b32 v17, 1, v4
    v_add_u32 v17, s43, v17
    v_lshlrev_b32 v17, 13, v17
    v_and_b32 v18, 1, v4
    v_lshl_add_u32 v18, v18, 3, v5
    v_lshl_add_u32 v17, v18, 4, v17
    s_lshl_b32 s43, s41, 8
    v_add_u32 v17, s43, v17
    v_cmp_gt_u32 s[56:57], 8, v3
    v_cmp_gt_u32 s[58:59], 2, v4       ; g4<2 mask
    s_mov_b32 s60, 12288
    v_mul_lo_u32 v18, v3, s60
    s_mul_i32 s43, s41, 384
    v_add_u32 v18, s43, v18
    v_lshl_add_u32 v18, v4, 4, v18
    v_add_u32 v19, {16*12288:#x}, v18
    s_mul_i32 s43, s41, 12288
    v_lshlrev_b32 v20, 4, v2
    v_add_u32 v20, s43, v20
    v_add_u32 v21, 4096, v20
    v_add_u32 v22, 8192, v20
    s_lshl_b32 s43, s2, 13
    v_lshlrev_b32 v23, 4, v2
    v_add_u32 v23, s43, v23
    s_mov_b32 s61, {SCALE!r}
    s_mov_b32 s62, 0                   ; step
    s_mov_b32 s63, 0
    s_mov_b32 s64, 0
    s_mov_b32 s65, 0
    """)
    def prefetch_k():
        for kt in range(2):
            for ks in range(6):
                r = KXF + (kt * 6 + ks) * 4
                a(f'buffer_load_dwordx4 v[{r}:{r+3}], v{18+kt}, s[32:35], s63 offen offset:{ks*64}')
    def prefetch_v():
        for t in range(12):
            r = VXF + 4 * t
            a(f'buffer_load_dwordx4 v[{r}:{r+3}], v{20+t//4}, s[36:39], s64 offen offset:{(t%4)*1024}')
    prefetch_k(); prefetch_v()
    a('s_barrier')
    a.label('L_ch_step')
    a(f"""
    s_and_b32 s66, s62, 3
    s_lshl_b32 s67, s66, 14
    s_mul_i32 s68, s66, {QKVR_STRIDE}
    s_mul_i32 s69, s66, {PR_STRIDE}
    s_add_u32 s66, s62, 2
    s_and_b32 s66, s66, 3
    s_mul_i32 s70, s66, {QKVR_STRIDE}
    s_mul_i32 s71, s66, {PR_STRIDE}
    s_add_u32 s66, s62, 1
    s_and_b32 s66, s66, 3
    s_lshl_b32 s72, s66, 14
    s_add_u32 s66, s62, 3
    s_and_b32 s66, s66, 3
    s_lshl_b32 s73, s66, 14
    s_mov_b32 s74, 0
    """)
    a.label('L_ch_pollA')
    for ks in range(5):
        a(f'buffer_load_dwordx4 v[{MEMF+4*ks}:{MEMF+4*ks+3}], v6, s[16:19], s67 offen offset:{ks*512} sc1')
    a('s_waitcnt vmcnt(0)')
    def anysent(regs, t):
        a(f'v_max3_u32 v{t}, v{regs[0]}, v{regs[1]}, v{regs[2]}')
        i = 3
        while i < len(regs):
            if i + 1 < len(regs):
                a(f'v_max3_u32 v{t}, v{t}, v{regs[i]}, v{regs[i+1]}'); i += 2
            else:
                a(f'v_max_u32 v{t}, v{t}, v{regs[i]}'); i += 1
        a(f'v_cmp_eq_u32 vcc, -1, v{t}')
    def spin(lbl):
        a(f"""
        s_add_u32 s74, s74, 1
        s_cmp_ge_u32 s74, {SPIN_MAX}
        s_cbranch_scc1 L_ch_done
        s_nop 1
        s_cbranch_vccnz {lbl}
        """)
    anysent(list(range(MEMF, MEMF + 20)), TMP)
    spin('L_ch_pollA')
    for r in range(ACC1, ACC1 + 36):
        a(f'v_mov_b32 v{r}, 0')
    a('s_cmp_eq_u32 s42, 2')
    a('s_cbranch_scc1 L_ch_p1_mix')
    a('s_cmp_eq_u32 s42, 3')
    a('s_cbranch_scc1 L_ch_p1_n')
    def p1(nfrom):
        for ks in range(5):
            for t in range(9):
                acc = ACC1 + 4 * t
                w = f'a[{AW1+(t*5+ks)*4}:{AW1+(t*5+ks)*4+3}]'
                m = f'v[{MEMF+4*ks}:{MEMF+4*ks+3}]'
                if t < nfrom:
                    a(f'v_mfma_f32_16x16x32_bf16 v[{acc}:{acc+3}], {w}, {m}, v[{acc}:{acc+3}]')
                else:
                    a(f'v_mfma_f32_16x16x32_bf16 v[{acc}:{acc+3}], {m}, {w}, v[{acc}:{acc+3}]')
    p1(9)
    a('s_branch L_ch_p1_done')
    a.label('L_ch_p1_mix')
    p1(6)
    a('s_branch L_ch_p1_done')
    a.label('L_ch_p1_n')
    p1(0)
    a.label('L_ch_p1_done')
    a('s_nop 7')
    a('s_nop 1')
    for t in range(9):
        a(f'ds_write_b128 v8, v[{ACC1+4*t}:{ACC1+4*t+3}] offset:{t*1024}')
    a('s_waitcnt lgkmcnt(0)')
    a('s_barrier')
    a('s_mov_b64 exec, s[52:53]')
    a('s_cbranch_execz L_ch_nopub')
    R = MEMF
    for w in range(4):
        a(f'ds_read_b128 v[{R+8*w}:{R+8*w+3}], v9 offset:{w*9216}')
        a(f'ds_read_b128 v[{R+8*w+4}:{R+8*w+7}], v9 offset:{w*9216+256}')
    a('s_waitcnt lgkmcnt(0)')
    for j in range(8):
        a(f'v_add_f32 v{R+j}, v{R+j}, v{R+8+j}')
        a(f'v_add_f32 v{R+16+j}, v{R+16+j}, v{R+24+j}')
        a(f'v_add_f32 v{R+j}, v{R+j}, v{R+16+j}')
    for j in range(4):
        a(f'v_cvt_pk_bf16_f32 v{R+8+j}, v{R+2*j}, v{R+2*j+1}')
        a(f'v_min_u32 v{R+8+j}, 0xfffffffe, v{R+8+j}')
    a(f'buffer_store_dwordx4 v[{R+8}:{R+11}], v10, s[20:23], s68 offen sc1')
    a('s_mov_b64 exec, s[54:55]')
    a('s_cbranch_execz L_ch_nopub')
    a(f'buffer_store_dwordx4 v[{R+8}:{R+11}], v11, s[28:31], s65 offen')
    a.label('L_ch_nopub')
    a('s_mov_b64 exec, -1')
    a(f's_cmp_eq_u32 s62, {NSEG-1}')
    a('s_cbranch_scc1 L_ch_done')
    a('s_mov_b32 s74, 0')
    a.label('L_ch_pollB')
    a(f'buffer_load_dwordx4 v[{R}:{R+3}], v12, s[20:23], s68 offen sc1')
    a(f'buffer_load_dwordx4 v[{R+4}:{R+7}], v12, s[20:23], s68 offen offset:1024 sc1')
    a(f'buffer_load_dwordx4 v[{R+8}:{R+11}], v13, s[20:23], s68 offen sc1')
    a('s_waitcnt vmcnt(0)')
    anysent(list(range(R, R + 12)), TMP)
    spin('L_ch_pollB')
    a(f'ds_write_b128 v15, v[{R}:{R+3}]')
    a(f'ds_write_b128 v15, v[{R+4}:{R+7}] offset:1024')
    a(f'ds_write_b128 v16, v[{R+8}:{R+11}]')
    a('s_waitcnt lgkmcnt(0)')
    a('s_barrier')
    for ks in range(6):
        a(f'ds_read_b128 v[{QF+4*ks}:{QF+4*ks+3}], v7 offset:{ks*512}')
        a(f'ds_read_b128 v[{KMF+4*ks}:{KMF+4*ks+3}], v7 offset:{3072+ks*512}')
    for r in range(SACC, SACC + 12):
        a(f'v_mov_b32 v{r}, 0')
    a('s_waitcnt lgkmcnt(0)')
    for t in range(12):
        a(f'ds_read_b64 v[{VMF+2*t}:{VMF+2*t+1}], v14 offset:{t*256}')
    for ks in range(6):
        q = f'v[{QF+4*ks}:{QF+4*ks+3}]'
        a(f'v_mfma_f32_16x16x32_bf16 v[{SACC}:{SACC+3}], v[{KMF+4*ks}:{KMF+4*ks+3}], {q}, v[{SACC}:{SACC+3}]')
        a(f'v_mfma_f32_16x16x32_bf16 v[{SACC+4}:{SACC+7}], v[{KXF+4*ks}:{KXF+4*ks+3}], {q}, v[{SACC+4}:{SACC+7}]')
        a(f'v_mfma_f32_16x16x32_bf16 v[{SACC+8}:{SACC+11}], v[{KXF+24+4*ks}:{KXF+24+4*ks+3}], {q}, v[{SACC+8}:{SACC+11}]')
    a('v_mov_b32 v26, 0xce6e6b28')
    a('s_nop 7')
    a('s_nop 1')
    a(f's_add_u32 s63, s63, {32*12288}')
    prefetch_k()
    softmax_block(a, list(range(SACC, SACC + 12)), {SACC + r: 's[58:59]' for r in range(4)}, 61, 24, 25, 26)
    a(f'v_cvt_pk_bf16_f32 v{PF}, v{SACC+4}, v{SACC+5}')
    a(f'v_cvt_pk_bf16_f32 v{PF+1}, v{SACC+6}, v{SACC+7}')
    a(f'v_cvt_pk_bf16_f32 v{PF+2}, v{SACC+8}, v{SACC+9}')
    a(f'v_cvt_pk_bf16_f32 v{PF+3}, v{SACC+10}, v{SACC+11}')
    a(f'v_cvt_pk_bf16_f32 v{PF+4}, v{SACC}, v{SACC+1}')
    a(f'v_cvt_pk_bf16_f32 v{PF+5}, v{SACC+2}, v{SACC+3}')
    for r in range(OACC, OACC + 44):
        a(f'v_mov_b32 v{r}, 0')
    for r in range(OACC + 44, OACC + 48):
        a(f'v_mov_b32 v{r}, 0')
    a('s_waitcnt lgkmcnt(0)')
    a('s_nop 0')
    for t in range(12):
        o = OACC + 4 * t
        a(f'v_mfma_f32_16x16x32_bf16 v[{o}:{o+3}], v[{VXF+4*t}:{VXF+4*t+3}], v[{PF}:{PF+3}], v[{o}:{o+3}]')
    for t in range(12):
        o = OACC + 4 * t
        a(f'v_mfma_f32_16x16x16_bf16 v[{o}:{o+3}], v[{VMF+2*t}:{VMF+2*t+1}], v[{PF+4}:{PF+5}], v[{o}:{o+3}]')
    a('s_nop 7')
    a('s_nop 1')
    a(f's_add_u32 s64, s64, {384*1024}')
    prefetch_v()
    for t in range(12):
        o = OACC + 4 * t
        a(f'v_cvt_pk_bf16_f32 v{OF+2*t}, v{o}, v{o+1}')
        a(f'v_cvt_pk_bf16_f32 v{OF+2*t+1}, v{o+2}, v{o+3}')
    for r in range(PACC, PACC + 12):
        a(f'v_mov_b32 v{r}, 0')
    a('s_nop 1')
    for ks2 in range(6):
        for tt in range(3):
            p = PACC + 4 * tt
            w = AWO + (tt * 6 + ks2) * 4
            a(f'v_mfma_f32_16x16x32_bf16 v[{p}:{p+3}], a[{w}:{w+3}], v[{OF+4*ks2}:{OF+4*ks2+3}], v[{p}:{p+3}]')
    a('s_nop 7')
    a('s_nop 1')
    for r in range(PACC, PACC + 12):
        a(f'v_min_u32 v{r}, 0xfffffffe, v{r}')
    for r in range(28, 32):
        a(f'v_mov_b32 v{r}, -1')
    a('s_mov_b64 exec, s[56:57]')
    a(f'buffer_store_dwordx4 v[{PACC}:{PACC+3}], v17, s[24:27], s69 offen sc1')
    a('s_add_u32 s66, s69, 16384')
    a(f'buffer_store_dwordx4 v[{PACC+4}:{PACC+7}], v17, s[24:27], s66 offen sc1')
    a('s_cmp_ge_u32 s40, 2')
    a('s_cbranch_scc1 L_ch_no3')
    a('s_add_u32 s66, s69, 32768')
    a(f'buffer_store_dwordx4 v[{PACC+8}:{PACC+11}], v17, s[24:27], s66 offen sc1')
    a('s_add_u32 s66, s71, 32768')
    a('buffer_store_dwordx4 v[28:31], v17, s[24:27], s66 offen sc1')
    a.label('L_ch_no3')
    a('buffer_store_dwordx4 v[28:31], v17, s[24:27], s71 offen sc1')
    a('s_add_u32 s66, s71, 16384')
    a('buffer_store_dwordx4 v[28:31], v17, s[24:27], s66 offen sc1')
    a('s_mov_b64 exec, s[52:53]')
    a('s_cbranch_execz L_ch_noclr')
    a('buffer_store_dwordx4 v[28:31], v10, s[20:23], s70 offen sc1')
    a.label('L_ch_noclr')
    a('s_mov_b64 exec, -1')
    a('s_cmp_lg_u32 s40, 3')
    a('s_cbranch_scc1 L_ch_next')
    a('s_cmp_ge_u32 s2, 80')
    a('s_cbranch_scc1 L_ch_next')
    a('s_mov_b32 s74, 0')
    a('v_add_u32 v27, 4096, v23')
    a.label('L_ch_pollC')
    for i in range(8):
        a(f'buffer_load_dwordx4 v[{R+4*i}:{R+4*i+3}], v{23 if i<4 else 27}, s[24:27], s69 offen offset:{(i%4)*1024} sc1')
    a('s_waitcnt vmcnt(0)')
    anysent(list(range(R, R + 32)), TMP)
    spin('L_ch_pollC')
    for j in range(4):
        for i in range(1, 8):
            a(f'v_add_f32 v{R+j}, v{R+j}, v{R+4*i+j}')
    for j in range(4):
        xgroup_reduce(a, R + j, TMP, 'v_add_f32')
    a(f"""
    v_cvt_pk_bf16_f32 v{R+4}, v{R}, v{R+1}
    v_cvt_pk_bf16_f32 v{R+5}, v{R+2}, v{R+3}
    v_min_u32 v{R+4}, 0xfffffffe, v{R+4}
    v_min_u32 v{R+5}, 0xfffffffe, v{R+5}
    ; dst = r*128 + (l&7)*16 + ((l>>3)&1)*8
    v_lshrrev_b32 v24, 3, v2
    v_and_b32 v24, 1, v24
    v_lshlrev_b32 v24, 3, v24
    v_lshl_add_u32 v24, v5, 4, v24
    s_lshl_b32 s66, s2, 7
    v_add_u32 v24, s66, v24
    s_mov_b64 exec, 0xffff
    buffer_store_dwordx2 v[{R+4}:{R+5}], v24, s[16:19], s72 offen sc1
    buffer_store_dwordx2 v[28:29], v24, s[16:19], s73 offen sc1
    s_mov_b64 exec, -1
    """)
    a.label('L_ch_next')
    a(f"""
    s_add_u32 s62, s62, 1
    s_add_u32 s65, s65, {32*6144}
    s_branch L_ch_step
    """)
    a.label('L_ch_done')
    a('s_endpgm')
    return name, kernel_desc(name, 512, accum=256), (NWG, 256, LDS_BYTES)
```

```python
from common import *


def gen_gemm(a, cfg):
    name = cfg['name']; BM = cfg['BM']; BN = cfg['BN']; WR = cfg['WR']; WC = cfg['WC']
    NW = WR * WC
    WM, WN = BM // WR, BN // WC
    MT, NT = WM // 16, WN // 16
    nb = cfg.get('nb', 1)
    BNs = BN // nb
    rowb = BNs * 2
    lda, ldw = cfg['lda'], cfg['ldw']
    nk = cfg['nk']
    tm, tn, ks = cfg['tiles']
    ntiles = tm * tn * ks
    A_BYTES = BM * 64
    B_BYTES = 32 * BN * 2
    STAGE = A_BYTES + B_BYTES
    nA = A_BYTES // 1024 // NW
    nB = B_BYTES // 1024 // NW
    assert A_BYTES % (1024 * NW) == 0 and B_BYTES % (1024 * NW) == 0
    NDMA = nA + nB
    L = f'L_{name}'
    kernel_header(a, name)
    a(f"""
    s_cmp_ge_u32 s2, {ntiles}
    s_cbranch_scc1 {L}_done
    s_load_dwordx2 s[4:5], s[0:1], {KA_WS}
    s_load_dwordx2 s[6:7], s[0:1], {cfg['w_srcs'][0]}
    s_load_dwordx2 s[8:9], s[0:1], {cfg['w_srcs'][-1]}
    """)
    def divmod_const(src, q, r, d):
        magic = (1 << 32) // d + 1
        a(f's_mov_b32 s60, {magic:#x}')
        a(f's_mul_hi_u32 s{q}, s{src}, s60')
        a(f's_mul_i32 s61, s{q}, {d}')
        a(f's_sub_u32 s{r}, s{src}, s61')
    divmod_const(2, 43, 40, tn)
    divmod_const(43, 42, 41, tm)
    a("""
    v_lshrrev_b32 v1, 6, v0
    v_and_b32 v2, 63, v0
    s_nop 0
    v_readfirstlane_b32 s44, v1
    s_waitcnt lgkmcnt(0)
    """)
    a(f's_lshr_b32 s45, s44, {WC.bit_length()-1}')
    a(f's_and_b32 s46, s44, {WC-1}')
    kind, aoff, abytes = cfg['a_src']
    srd(a, 12, 4, abytes, aoff)
    if cfg['epi'] == 'qk':
        half = tn // 2
        a(f's_cmp_ge_u32 s40, {half}')
        a('s_cselect_b32 s16, s8, s6')
        a('s_cselect_b32 s17, s9, s7')
        a(f's_mov_b32 s18, {cfg["w_bytes"]:#x}')
        a('s_mov_b32 s19, 0x20000')
        a(f's_cselect_b32 s47, {half}, 0')
        a('s_sub_u32 s47, s40, s47')
    else:
        srd(a, 16, 6, cfg['w_bytes'])
        a('s_mov_b32 s47, s40')
    if nb == 2:
        srd(a, 20, 8, cfg['w_bytes'])
    a(f"""
    v_lshrrev_b32 v3, 2, v2
    v_and_b32 v4, 3, v2                ; pos
    v_lshrrev_b32 v5, 3, v3
    v_lshlrev_b32 v5, 1, v5
    v_xor_b32 v4, v4, v5               ; chunk
    s_mul_i32 s48, s41, {BM}           ; m0
    s_mul_i32 s49, s44, {nA*16}
    s_add_u32 s48, s48, s49
    v_add_u32 v3, s48, v3
    s_mov_b32 s60, {lda*2}
    v_mul_lo_u32 v3, v3, s60
    v_lshl_add_u32 v6, v4, 4, v3
    """)
    for i in range(1, nA):
        a(f'v_add_u32 v{6+i}, {i*16*lda*2:#x}, v6')
    vA0 = 6
    vB0 = 6 + nA
    lpr = rowb // 16
    rpi = 1024 // rowb
    ipb = (32 * rowb) // 1024
    assert nB <= ipb and ipb % nB == 0
    a(f"""
    s_mul_i32 s50, s44, {nB}
    """)
    a(f's_lshr_b32 s51, s50, {ipb.bit_length()-1}')
    a(f's_and_b32 s52, s50, {ipb-1}')
    for i in range(nB):
        a(f"""
        v_lshrrev_b32 v3, {lpr.bit_length()-1}, v2       ; l // lpr
        s_add_u32 s53, s52, {i}
        s_mul_i32 s53, s53, {rpi}
        v_add_u32 v3, s53, v3                            ; k row (0..31)
        v_and_b32 v4, {lpr-1}, v2                        ; pos16
        v_and_b32 v5, 3, v3
        v_lshrrev_b32 v30, 3, v3
        v_and_b32 v30, 1, v30
        v_lshl_or_b32 v5, v30, 2, v5                     ; y
        v_lshlrev_b32 v5, 1, v5
        v_xor_b32 v4, v4, v5
        s_mov_b32 s60, {ldw*2}
        v_mul_lo_u32 v3, v3, s60
        v_lshl_add_u32 v3, v4, 4, v3
        s_mul_i32 s53, s47, {BNs*2}                      ; n0 bytes
        v_add_u32 v{vB0+i}, s53, v3
        """)
    vFA = vB0 + nB
    vFB = vFA + 1
    vTA = vFB + 8
    vTB = vTA + 1
    vFR = vTB + 8
    vFR = (vFR + 3) // 4 * 4
    vAfr = vFR
    vBfr = vAfr + MT * 4
    vACC = vBfr + NT * 4
    vEND = vACC + MT * NT * 4
    a(f"""
    v_and_b32 v3, 15, v2
    v_lshrrev_b32 v4, 4, v2            ; g
    v_lshrrev_b32 v5, 3, v3
    v_lshlrev_b32 v5, 1, v5
    v_xor_b32 v5, v4, v5
    s_mul_i32 s53, s45, {WM}
    v_add_u32 v30, s53, v3
    v_lshlrev_b32 v30, 6, v30
    v_lshl_add_u32 v{vFA}, v5, 4, v30
    """)
    a(f"""
    v_lshrrev_b32 v5, 2, v3            ; r
    v_and_b32 v30, 3, v2               ; c
    v_lshl_add_u32 v31, v4, 3, v5      ; k = 8g + r
    v_mul_u32_u24 v31, {rowb}, v31
    v_lshl_add_u32 v31, v30, 3, v31
    v_add_u32 v31, {A_BYTES}, v31
    v_and_b32 v30, 1, v4
    v_lshl_or_b32 v5, v30, 2, v5       ; y
    """)
    for u in range(8):
        a(f'v_xor_b32 v30, {u}, v5')
        a(f'v_lshl_add_u32 v{vFB+u}, v30, 5, v31')
    NTs = NT // nb
    if NTs >= 8:
        assert NTs % 8 == 0
        a(f's_mul_i32 s53, s46, {NTs*32}')
        for u in range(8):
            a(f'v_add_u32 v{vFB+u}, s53, v{vFB+u}')
        unit_of = lambda t: (t // NTs, t % NTs)
        lowbits = lambda lu: lu & 7
        highoff = lambda lu: (lu >> 3) * 256
    else:
        a(f's_mul_i32 s53, s46, {NTs}')
        for u in range(NTs):
            a(f'v_add_u32 v30, s53, {u}' if False else f's_add_u32 s54, s53, {u}')
            a(f'v_xor_b32 v30, s54, v5')
            a(f'v_lshl_add_u32 v{vFB+u}, v30, 5, v31')
        unit_of = lambda t: (t // NTs, t % NTs)
        lowbits = lambda lu: lu
        highoff = lambda lu: 0
    nFB = 8 if NTs >= 8 else NTs
    for r in range(vACC, vEND):
        a(f'v_mov_b32 v{r}, 0')
    kbase = cfg.get('ksplit_len', 0)
    a(f's_mul_i32 s56, s42, {kbase*2}')
    a(f's_mul_i32 s57, s42, {kbase*ldw*2}')
    a('s_mov_b32 s58, 0')
    a('s_mov_b32 s59, 0')
    a(f's_mul_i32 s63, s44, {nA*1024}')
    a(f's_mul_i32 s64, s44, {nB*1024}')
    a(f's_add_u32 s64, s64, {A_BYTES}')
    if nb == 2:
        a('s_cmp_eq_u32 s51, 0')
        a('s_cselect_b32 s24, s16, s20')
        a('s_cselect_b32 s25, s17, s21')
        a(f's_mov_b32 s26, {cfg["w_bytes"]:#x}')
        a('s_mov_b32 s27, 0x20000')
        BS = 24
    else:
        BS = 16
    def dma():
        for i in range(nA):
            a(f's_add_u32 s65, s58, s63')
            a(f's_add_u32 m0, s65, {i*1024}')
            a('s_nop 0')
            a(f'buffer_load_dwordx4 v{vA0+i}, s[12:15], s56 offen lds')
        for i in range(nB):
            a(f's_add_u32 s65, s58, s64')
            a(f's_add_u32 m0, s65, {i*1024}')
            a('s_nop 0')
            a(f'buffer_load_dwordx4 v{vB0+i}, s[{BS}:{BS+3}], s57 offen lds')
        a('s_add_u32 s56, s56, 64')
        a(f's_add_u32 s57, s57, {32*ldw*2}')
        a(f's_add_u32 s58, s58, {STAGE}')
        a(f's_cmp_ge_u32 s58, {3*STAGE}')
        a('s_cselect_b32 s58, 0, s58')
    def compute():
        a(f'v_add_u32 v{vTA}, s59, v{vFA}')
        for u in range(nFB):
            a(f'v_add_u32 v{vTB+u}, s59, v{vFB+u}')
        reads = []
        for t in range(NT):
            sub, lu = unit_of(t)
            base = sub * 32 * rowb + highoff(lu)
            reads.append(('B', t, f'ds_read_b64_tr_b16 v[{vBfr+4*t}:{vBfr+4*t+1}], v{vTB+lowbits(lu)} offset:{base}'))
            reads.append(('B', t, f'ds_read_b64_tr_b16 v[{vBfr+4*t+2}:{vBfr+4*t+3}], v{vTB+lowbits(lu)} offset:{base+4*rowb}'))
        areads = [('A', t, f'ds_read_b128 v[{vAfr+4*t}:{vAfr+4*t+3}], v{vTA} offset:{t*1024}') for t in range(MT)]
        order = reads + areads
        for r in order[:len(reads) + 2]:
            a(r[2])
        issued = len(reads) + 2
        total = len(order)
        for mt in range(MT):
            a(f's_waitcnt lgkmcnt({issued - (len(reads) + mt + 1)})')
            for nt in range(NT):
                acc = vACC + (mt * NT + nt) * 4
                A_, B_ = f'v[{vAfr+4*mt}:{vAfr+4*mt+3}]', f'v[{vBfr+4*nt}:{vBfr+4*nt+3}]'
                if cfg['form'] == 'T':
                    a(f'v_mfma_f32_16x16x32_bf16 v[{acc}:{acc+3}], {B_}, {A_}, v[{acc}:{acc+3}]')
                else:
                    a(f'v_mfma_f32_16x16x32_bf16 v[{acc}:{acc+3}], {A_}, {B_}, v[{acc}:{acc+3}]')
                if nt == 0 and issued < total:
                    a(order[issued][2]); issued += 1
        a(f's_add_u32 s59, s59, {STAGE}')
        a(f's_cmp_ge_u32 s59, {3*STAGE}')
        a('s_cselect_b32 s59, 0, s59')
    dma(); dma()
    a(f's_mov_b32 s62, {nk-2}')
    a.label(f'{L}_loop')
    a(f's_waitcnt vmcnt({NDMA})')
    a('s_barrier')
    dma()
    compute()
    a('s_sub_u32 s62, s62, 1')
    a('s_cmp_lg_u32 s62, 0')
    a(f's_cbranch_scc1 {L}_loop')
    a(f's_waitcnt vmcnt({NDMA})')
    a('s_barrier')
    compute()
    a('s_waitcnt vmcnt(0)')
    a('s_barrier')
    compute()
    a('s_nop 7')
    a('s_nop 7')
    epi = cfg['epi']
    T0 = vFR
    if epi in ('qk', 'ffn2', 'ffn1', 'part'):
        ldo = cfg['ldo']
        esz = 4 if epi == 'part' else 2
        if epi == 'qk':
            a(f's_cmp_ge_u32 s40, {tn//2}')
            a(f's_mov_b32 s54, {QX_OFF:#x}')
            a(f's_cselect_b32 s53, {KX_OFF:#x}, s54')
            a('s_add_u32 s28, s4, s53')
            a('s_addc_u32 s29, s5, 0')
            a(f's_mov_b32 s30, {S*HD*2:#x}')
            a('s_mov_b32 s31, 0x20000')
        elif epi == 'part':
            a(f's_mul_i32 s53, s42, {S*DM*4}')
            a(f's_add_u32 s53, s53, {PART_OFF:#x}')
            a('s_add_u32 s28, s4, s53')
            a('s_addc_u32 s29, s5, 0')
            a(f's_mov_b32 s30, {S*DM*4:#x}')
            a('s_mov_b32 s31, 0x20000')
        else:
            srd(a, 28, 4, cfg['out_bytes'], cfg['out_off'])
        WNo = WN // nb
        a(f"""
        v_and_b32 v3, 15, v2
        v_lshrrev_b32 v4, 4, v2
        s_mul_i32 s53, s41, {BM}
        s_mul_i32 s54, s45, {WM}
        s_add_u32 s53, s53, s54
        v_add_u32 v3, s53, v3
        s_mov_b32 s60, {ldo*esz}
        v_mul_lo_u32 v3, v3, s60
        s_mul_i32 s53, s47, {BNs}
        s_mul_i32 s54, s46, {WNo}
        s_add_u32 s53, s53, s54
        v_lshl_add_u32 v4, v4, 2, s53
        v_lshl_add_u32 v3, v4, {1 if esz==2 else 2}, v3
        """)
        for mt in range(MT):
            if mt:
                a(f'v_add_u32 v3, {16*ldo*esz:#x}, v3')
            for nt in range(NT // nb):
                acc = vACC + (mt * NT + nt) * 4
                t = T0 + 4 * (nt % 4)
                if epi == 'part':
                    a(f'buffer_store_dwordx4 v[{acc}:{acc+3}], v3, s[28:31], 0 offen offset:{nt*64}')
                    continue
                if epi == 'ffn1':
                    accu = vACC + (mt * NT + nt + NT // 2) * 4
                    for r in range(4):
                        bf16r(a, acc + r, acc + r)
                        bf16r(a, accu + r, accu + r)
                        a(f'v_cmp_lt_f32 vcc, 0, v{acc+r}')
                        a('s_nop 1')
                        a(f'v_cndmask_b32 v{t+2}, 0, 1.0, vcc')
                        a(f'v_mul_f32 v{acc+r}, v{acc+r}, v{t+2}')
                        a(f'v_mul_f32 v{acc+r}, v{acc+r}, v{accu+r}')
                a(f'v_cvt_pk_bf16_f32 v{t}, v{acc}, v{acc+1}')
                a(f'v_cvt_pk_bf16_f32 v{t+1}, v{acc+2}, v{acc+3}')
                a(f'buffer_store_dwordx2 v[{t}:{t+1}], v3, s[28:31], 0 offen offset:{nt*32}')
    elif epi == 'v':
        srd(a, 28, 4, S * HD * 2, VF_OFF)
        a(f"""
        s_mul_i32 s53, s41, {BM//32}
        s_mul_i32 s54, s45, {WM//32}
        s_add_u32 s53, s53, s54            ; seg0
        s_mul_i32 s53, s53, {384*1024}
        s_mul_i32 s54, s47, {BN//16}
        s_mul_i32 s55, s46, {NT}
        s_add_u32 s54, s54, s55
        s_lshl_b32 s54, s54, 10
        s_add_u32 s53, s53, s54
        v_lshlrev_b32 v3, 4, v2
        v_add_u32 v3, s53, v3
        """)
        for mp in range(MT // 2):
            if mp:
                a(f'v_add_u32 v3, {384*1024:#x}, v3')
            for nt in range(NT):
                a0 = vACC + ((2 * mp) * NT + nt) * 4
                a1 = vACC + ((2 * mp + 1) * NT + nt) * 4
                t = T0 + 4 * (nt % 4)
                a(f'v_cvt_pk_bf16_f32 v{t}, v{a0}, v{a0+1}')
                a(f'v_cvt_pk_bf16_f32 v{t+1}, v{a0+2}, v{a0+3}')
                a(f'v_cvt_pk_bf16_f32 v{t+2}, v{a1}, v{a1+1}')
                a(f'v_cvt_pk_bf16_f32 v{t+3}, v{a1+2}, v{a1+3}')
                a(f'buffer_store_dwordx4 v[{t}:{t+3}], v3, s[28:31], 0 offen offset:{nt*1024}')
    a.label(f'{L}_done')
    a('s_endpgm')
    return name, kernel_desc(name, vEND), (ntiles, NW * 64, 3 * STAGE)

GEMMS = [
    dict(name='gqk_kernel', BM=256, BN=256, WR=2, WC=4, a_src=('ws', XN_OFF, S*DM*2), lda=DM, nk=DM//32,
         w_srcs=[KA_WQ, KA_WK], ldw=HD, w_bytes=DM*HD*2, tiles=(S//256, 2*HD//256, 1), form='T', epi='qk', ldo=HD),
    dict(name='gv_kernel', BM=256, BN=256, WR=2, WC=4, a_src=('ws', XN_OFF, S*DM*2), lda=DM, nk=DM//32,
         w_srcs=[KA_WV], ldw=HD, w_bytes=DM*HD*2, tiles=(S//256, HD//256, 1), form='N', epi='v'),
    dict(name='gf1_kernel', BM=128, BN=256, WR=2, WC=4, a_src=('ws', XN_OFF, S*DM*2), lda=DM, nk=DM//32, nb=2,
         w_srcs=[KA_WG, KA_WU], ldw=FF, w_bytes=DM*FF*2, tiles=(S//128, FF//128, 1), form='T', epi='ffn1', ldo=FF,
         out_off=H_OFF, out_bytes=S*FF*2),
    dict(name='gf2_kernel', BM=128, BN=128, WR=2, WC=4, a_src=('ws', H_OFF, S*FF*2), lda=FF, nk=FF//32,
         w_srcs=[KA_WD], ldw=DM, w_bytes=FF*DM*2, tiles=(S//128, DM//128, 1), form='T', epi='ffn2', ldo=DM,
         out_off=BO_OFF, out_bytes=S*DM*2),
    dict(name='gout_kernel', BM=128, BN=128, WR=2, WC=4, a_src=('ws', O_OFF, S*HD*2), lda=HD, nk=2048//32, ksplit_len=2048,
         w_srcs=[KA_WO], ldw=DM, w_bytes=HD*DM*2, tiles=(S//128, DM//128, 3), form='T', epi='part', ldo=DM),
]
```

```python
from common import *

def gen_ln(a):
    name = 'ln_kernel'
    kernel_header(a, name)
    a(f"""
    s_cmp_ge_u32 s2, 512
    s_cbranch_scc1 L_ln_done
    s_load_dwordx2 s[4:5], s[0:1], {KA_X}
    s_load_dwordx2 s[6:7], s[0:1], {KA_MEM0}
    s_load_dwordx2 s[8:9], s[0:1], {KA_WS}
    s_waitcnt lgkmcnt(0)
    """)
    srd(a, 12, 4, S * DM * 2)
    srd(a, 16, 8, S * DM * 2, XN_OFF)
    srd(a, 20, 6, MM * DM * 2)
    fill_base = MEMR_OFF + MEMR_STRIDE
    fill_bytes = RING_END - fill_base
    srd(a, 24, 8, fill_bytes, fill_base)
    srd(a, 28, 8, 10240, MEMR_OFF)
    a(f"""
    v_lshrrev_b32 v1, 6, v0            ; wave
    v_and_b32 v2, 63, v0               ; lane
    s_lshl_b32 s3, s2, 2
    v_add_u32 v3, s3, v1               ; row
    v_mul_u32_u24 v3, 1280, v3
    v_lshl_add_u32 v3, v2, 2, v3
    buffer_load_dword v10, v3, s[12:15], 0 offen
    buffer_load_dword v11, v3, s[12:15], 0 offen offset:256
    buffer_load_dword v12, v3, s[12:15], 0 offen offset:512
    buffer_load_dword v13, v3, s[12:15], 0 offen offset:768
    buffer_load_dword v14, v3, s[12:15], 0 offen offset:1024
    s_lshl_b32 s3, s2, 8
    v_add_u32 v4, s3, v0               ; gid
    v_lshlrev_b32 v5, 4, v4            ; gid*16
    v_mov_b32 v40, -1
    v_mov_b32 v41, -1
    v_mov_b32 v42, -1
    v_mov_b32 v43, -1
    v_add_u32 v6, {131072*16:#x}, v5
    buffer_store_dwordx4 v[40:43], v5, s[24:27], 0 offen
    buffer_store_dwordx4 v[40:43], v6, s[24:27], 0 offen
    v_and_b32 v6, 7, v4                ; row
    v_lshrrev_b32 v7, 3, v4            ; line r
    v_mul_u32_u24 v8, 1280, v6
    v_lshl_add_u32 v8, v7, 4, v8
    v_cmp_gt_u32 vcc, 640, v4
    s_and_saveexec_b64 s[32:33], vcc
    s_cbranch_execz L_ln_nomem
    buffer_load_dwordx4 v[44:47], v8, s[20:23], 0 offen
    v_lshlrev_b32 v9, 7, v7
    v_lshl_add_u32 v9, v6, 4, v9
    s_waitcnt vmcnt(0)
    v_min_u32 v44, 0xfffffffe, v44
    v_min_u32 v45, 0xfffffffe, v45
    v_min_u32 v46, 0xfffffffe, v46
    v_min_u32 v47, 0xfffffffe, v47
    buffer_store_dwordx4 v[44:47], v9, s[28:31], 0 offen
    """)
    a.label('L_ln_nomem')
    a("""
    s_mov_b64 exec, s[32:33]
    s_waitcnt vmcnt(0)
    """)
    for i in range(5):
        a(f'v_lshlrev_b32 v{20+2*i}, 16, v{10+i}')
        a(f'v_and_b32 v{21+2*i}, 0xffff0000, v{10+i}')
    def wave_sum(reg):
        for x in (0x041F, 0x081F, 0x101F, 0x201F, 0x401F):
            a(f'ds_swizzle_b32 v31, v{reg} offset:{x:#x}')
            a('s_waitcnt lgkmcnt(0)')
            a(f'v_add_f32 v{reg}, v{reg}, v31')
        a('s_nop 0')
        a(f'v_readlane_b32 s34, v{reg}, 0')
        a(f'v_readlane_b32 s35, v{reg}, 32')
        a('s_nop 1')
        a(f'v_mov_b32 v{reg}, s34')
        a(f'v_add_f32 v{reg}, s35, v{reg}')
    a('v_add_f32 v30, v20, v21')
    for i in range(2, 10):
        a(f'v_add_f32 v30, v30, v{20+i}')
    wave_sum(30)
    a(f'v_mul_f32 v30, {1.0/640!r}, v30')
    a('v_sub_f32 v32, v20, v30')
    a('v_mul_f32 v33, v32, v32')
    for i in range(1, 10):
        a(f'v_sub_f32 v32, v{20+i}, v30')
        a('v_fmac_f32 v33, v32, v32')
    wave_sum(33)
    a(f'v_mul_f32 v33, {1.0/640!r}, v33')
    bf16r(a, 30, 30)
    bf16r(a, 33, 33)
    a('v_add_f32 v33, 0x3727c5ac, v33')
    bf16r(a, 33, 33)
    a('v_sqrt_f32 v33, v33')
    a('s_nop 0')
    bf16r(a, 33, 33)
    a('v_rcp_f32 v34, v33')
    a('s_nop 0')
    for i in range(10):
        r = 20 + i
        a(f'v_sub_f32 v{r}, v{r}, v30')
        bf16r(a, r, r)
        a(f'v_mul_f32 v35, v{r}, v34')
        a(f'v_fma_f32 v36, -v35, v33, v{r}')
        a(f'v_fma_f32 v{r}, v36, v34, v35')
    for i in range(5):
        a(f'v_cvt_pk_bf16_f32 v{10+i}, v{20+2*i}, v{21+2*i}')
    a("""
    buffer_store_dword v10, v3, s[16:19], 0 offen
    buffer_store_dword v11, v3, s[16:19], 0 offen offset:256
    buffer_store_dword v12, v3, s[16:19], 0 offen offset:512
    buffer_store_dword v13, v3, s[16:19], 0 offen offset:768
    buffer_store_dword v14, v3, s[16:19], 0 offen offset:1024
    """)
    a.label('L_ln_done')
    a('s_endpgm')
    return name, kernel_desc(name, 64), (512, 256, 0)
```

```python
import sys
from common import *
from k_ln import gen_ln
from k_gemm import gen_gemm, GEMMS
from k_attn import gen_attn, gen_final
from k_chain import gen_chain

def build():
    a = Asm()
    ks = {}
    order = []
    def add(r):
        ks[r[0]] = r
    add(gen_ln(a))
    for g in GEMMS:
        add(gen_gemm(a, g))
    add(gen_chain(a))
    add(gen_attn(a))
    add(gen_final(a))
    order = ['ln_kernel', 'gqk_kernel', 'gv_kernel', 'gf1_kernel', 'gf2_kernel', 'chain_kernel', 'attn_kernel', 'gout_kernel', 'fin_kernel']
    hdr = open('parallel_sum__memory_aug_recurrent_mem_tr__glu_gated_reglu__prompt.s.ref').read().split('\n')
    head = [l for l in hdr if l.startswith(';') and '@launch' not in l and 'Override' not in l and 'grid=ceil' not in l]
    out = '\n'.join(head) + '\n'
    for n in order:
        g, b, lds = ks[n][2]
        out += f'; @launch kernel={n} grid=({g},1,1) block=({b},1,1) lds={lds}\n'
    out += '.amdgcn_target "amdgcn-amd-amdhsa--gfx950"\n.text\n'
    out += a.text()
    out += '.section .rodata,"a"\n'
    for n in order:
        out += '.p2align 6\n' + ks[n][1]
    return out

if __name__ == '__main__':
    s = build()
    open('parallel_sum__memory_aug_recurrent_mem_tr__glu_gated_reglu__prompt.s', 'w').write(s)
    print(len(s), 'bytes')
```

```python
class Asm:
    def __init__(self):
        self.lines = []
    def __call__(self, s):
        for l in s.strip('\n').split('\n'):
            l = l.strip()
            if l:
                self.lines.append('    ' + l)
    def label(self, l):
        self.lines.append(l + ':')
    def raw(self, s):
        self.lines.append(s)
    def text(self):
        return '\n'.join(self.lines) + '\n'

S, DM, H, DH, MM, SEG, FF = 2048, 640, 32, 192, 8, 32, 1536
HD = H * DH
NSEG = S // SEG
WS_BYTES = 268435456

KA_X, KA_MEM0, KA_WQ, KA_WK, KA_WV, KA_WO, KA_SEG, KA_BX, KA_WG, KA_WU, KA_WD, KA_OUT, KA_DBG, KA_WS = \
    0, 8, 16, 24, 32, 40, 48, 56, 64, 72, 80, 88, 96, 104

def _al(x, a=4096):
    return (x + a - 1) // a * a
off = 0
XN_OFF = off;   off = _al(off + S * DM * 2)
QX_OFF = off;   off = _al(off + S * HD * 2)
KX_OFF = off;   off = _al(off + S * HD * 2)
VF_OFF = off;   off = _al(off + S * HD * 2)
H_OFF = off;    off = _al(off + S * FF * 2)
BO_OFF = off;   off = _al(off + S * DM * 2)
O_OFF = off;    off = _al(off + S * HD * 2)
KVM_OFF = off;  off = _al(off + NSEG * H * 6144)
import os
KSP = int(os.environ.get('KSP', '6'))
PART_OFF = off; off = _al(off + 8 * S * DM * 4)
RING_OFF = off
MEMR_OFF = RING_OFF
MEMR_STRIDE = 16384
QKVR_OFF = RING_OFF + 8 * 65536
QKVR_STRIDE = 32 * 9216
PR_OFF = QKVR_OFF + 4 * QKVR_STRIDE
PR_STRIDE = 80 * 8192
RING_END = PR_OFF + 4 * PR_STRIDE
off = _al(RING_END)
CNT_OFF = off; off += 4096
WS_USED = off
assert WS_USED < WS_BYTES

def srd(a, d, blo, size, off=0):
    if off:
        a(f's_add_u32 s{d}, s{blo}, {off:#x}')
        a(f's_addc_u32 s{d+1}, s{blo+1}, 0')
    else:
        a(f's_mov_b32 s{d}, s{blo}')
        a(f's_mov_b32 s{d+1}, s{blo+1}')
    a(f's_mov_b32 s{d+2}, {size:#x}')
    a(f's_mov_b32 s{d+3}, 0x20000')

def kernel_header(a, name):
    a.raw(f'.globl {name}')
    a.raw('.p2align 8')
    a.raw(f'.type {name},@function')
    a.label(name)

def kernel_desc(name, vgpr, sgpr=102, accum=None):
    if accum is None:
        accum = (min(vgpr, 256) + 3) // 4 * 4
    return f""".amdhsa_kernel {name}
  .amdhsa_next_free_vgpr {vgpr}
  .amdhsa_next_free_sgpr {sgpr}
  .amdhsa_accum_offset {accum}
  .amdhsa_group_segment_fixed_size 0
  .amdhsa_kernarg_size 112
  .amdhsa_user_sgpr_count 2
  .amdhsa_user_sgpr_kernarg_segment_ptr 1
  .amdhsa_system_sgpr_workgroup_id_x 1
.end_amdhsa_kernel
"""

def bf16r(a, dst, src, tmp=None):
    a(f'v_cvt_pk_bf16_f32 v{dst}, v{src}, v{src}')
    a(f'v_lshlrev_b32 v{dst}, 16, v{dst}')
```

```python
from common import *
LOG2E = 1.4426950408889634
SCALE = 192 ** -0.5

def xgroup_reduce(a, x, tmp, op):
    a(f'v_mov_b32 v{tmp}, v{x}')
    a('s_nop 1')
    a(f'v_permlane32_swap_b32 v{x}, v{tmp}')
    a('s_nop 1')
    a(f'{op} v{x}, v{x}, v{tmp}')
    a(f'v_mov_b32 v{tmp}, v{x}')
    a('s_nop 1')
    a(f'v_permlane16_swap_b32 v{x}, v{tmp}')
    a('s_nop 1')
    a(f'{op} v{x}, v{x}, v{tmp}')

def softmax_block(a, regs, masks, sc_s, t0, t1, t2, tmps=None):
    n = len(regs)
    pairs = [(regs[i], regs[i + 1]) for i in range(0, n, 2)]
    def round_all():
        for x, y in pairs:
            a(f'v_cvt_pk_bf16_f32 v{x}, v{x}, v{y}')
        for x, y in pairs:
            a(f'v_and_b32 v{y}, 0xffff0000, v{x}')
        for x, y in pairs:
            a(f'v_lshlrev_b32 v{x}, 16, v{x}')
    round_all()
    for r in regs:
        a(f'v_mul_f32 v{r}, s{sc_s}, v{r}')
    round_all()
    for r in regs:
        if masks.get(r) is not None:
            a(f'v_cndmask_b32 v{r}, v{t2}, v{r}, {masks[r]}')
    a(f'v_max3_f32 v{t0}, v{regs[0]}, v{regs[1]}, v{regs[2]}')
    a(f'v_max3_f32 v{t1}, v{regs[3]}, v{regs[4]}, v{regs[5]}')
    i = 6
    while i < n:
        a(f'v_max3_f32 v{t0}, v{t0}, v{regs[i]}, v{regs[i+1]}')
        t0, t1 = t1, t0
        i += 2
    a(f'v_max_f32 v{t0}, v{t0}, v{t1}')
    xgroup_reduce(a, t0, t1, 'v_max_f32')
    a(f'v_mul_f32 v{t0}, {-LOG2E!r}, v{t0}')
    a(f'v_mov_b32 v{t1}, {LOG2E!r}')
    for r in regs:
        a(f'v_fma_f32 v{r}, v{r}, v{t1}, v{t0}')
    for r in regs:
        a(f'v_exp_f32 v{r}, v{r}')
    a('s_nop 0')
    a(f'v_add_f32 v{t0}, v{regs[0]}, v{regs[1]}')
    a(f'v_add_f32 v{t1}, v{regs[2]}, v{regs[3]}')
    for j in range(4, n, 2):
        a(f'v_add_f32 v{t0}, v{t0}, v{regs[j]}')
        a(f'v_add_f32 v{t1}, v{t1}, v{regs[j+1]}')
    a(f'v_add_f32 v{t0}, v{t0}, v{t1}')
    xgroup_reduce(a, t0, t1, 'v_add_f32')
    a(f'v_rcp_f32 v{t0}, v{t0}')
    a('s_nop 0')
    for r in regs:
        a(f'v_mul_f32 v{r}, v{r}, v{t0}')

def gen_attn(a):
    name = 'attn_kernel'
    kernel_header(a, name)
    NWG = 512
    a(f"""
    s_cmp_ge_u32 s2, {NWG}
    s_cbranch_scc1 L_at_done
    s_load_dwordx2 s[4:5], s[0:1], {KA_WS}
    v_lshrrev_b32 v1, 6, v0
    v_and_b32 v2, 63, v0
    s_nop 0
    v_readfirstlane_b32 s40, v1
    s_waitcnt lgkmcnt(0)
    s_lshr_b32 s41, s2, 3              ; seg
    s_and_b32 s42, s2, 7
    s_lshl_b32 s42, s42, 2
    s_add_u32 s42, s42, s40            ; head
    """)
    attn_body(a, '')
    a.label('L_at_done')
    a('s_endpgm')
    return name, kernel_desc(name, 248), (NWG, 256, 0)

def attn_body(a, SC):
    srd(a, 12, 4, S * HD * 2, QX_OFF)
    srd(a, 16, 4, S * HD * 2, KX_OFF)
    srd(a, 20, 4, S * HD * 2, VF_OFF)
    srd(a, 24, 4, NSEG * H * 6144, KVM_OFF)
    srd(a, 28, 4, S * HD * 2, O_OFF)
    QF, KX, KM, VX, VM = 32, 80, 128, 152, 200
    SA = 224
    OA = 32
    PF = 80
    a(f"""
    v_and_b32 v3, 15, v2               ; l&15
    v_lshrrev_b32 v4, 4, v2            ; g
    s_lshl_b32 s43, s41, 5
    v_add_u32 v5, s43, v3
    s_mov_b32 s60, 12288
    v_mul_lo_u32 v5, v5, s60
    s_mul_i32 s43, s42, 384
    v_add_u32 v5, s43, v5
    v_lshl_add_u32 v5, v4, 4, v5
    v_add_u32 v6, {16*12288:#x}, v5    ; tile1
    s_lshl_b32 s43, s41, 5
    s_add_u32 s43, s43, s42
    s_mul_i32 s44, s43, 6144
    v_and_b32 v7, 7, v2
    v_lshl_add_u32 v7, v4, 3, v7
    v_lshlrev_b32 v7, 4, v7
    v_add_u32 v7, s44, v7
    v_and_b32 v8, 1, v4
    v_lshlrev_b32 v8, 3, v8
    v_lshl_add_u32 v8, v3, 4, v8
    v_add_u32 v8, s44, v8
    v_add_u32 v8, 3072, v8
    s_mul_i32 s43, s41, 384
    s_mul_i32 s45, s42, 12
    s_add_u32 s43, s43, s45
    s_lshl_b32 s43, s43, 10
    v_lshlrev_b32 v9, 4, v2
    v_add_u32 v9, s43, v9
    v_add_u32 v10, 4096, v9
    v_add_u32 v11, 8192, v9
    """)
    for qt in range(2):
        for ks in range(6):
            r = QF + (qt * 6 + ks) * 4
            a(f'buffer_load_dwordx4 v[{r}:{r+3}], v{5+qt}, s[12:15], 0 offen offset:{ks*64}{SC}')
    for kt in range(2):
        for ks in range(6):
            r = KX + (kt * 6 + ks) * 4
            a(f'buffer_load_dwordx4 v[{r}:{r+3}], v{5+kt}, s[16:19], 0 offen offset:{ks*64}{SC}')
    for ks in range(6):
        r = KM + ks * 4
        a(f'buffer_load_dwordx4 v[{r}:{r+3}], v7, s[24:27], 0 offen offset:{ks*512}{SC}')
    for t in range(12):
        r = VX + t * 4
        a(f'buffer_load_dwordx4 v[{r}:{r+3}], v{9 + t//4}, s[20:23], 0 offen offset:{(t%4)*1024}{SC}')
    for t in range(12):
        r = VM + t * 2
        a(f'buffer_load_dwordx2 v[{r}:{r+1}], v8, s[24:27], 0 offen offset:{t*256}{SC}')
    a('v_cmp_gt_u32 s[46:47], 2, v4')
    for r in range(4):
        a(f'v_lshl_add_u32 v12, v4, 2, {r}')
        a(f'v_cmp_le_u32 s[{48+2*r}:{49+2*r}], v12, v3')
    a(f's_mov_b32 s56, {SCALE!r}')
    a('v_mov_b32 v13, 0xce6e6b28')
    for r in range(SA, SA + 24):
        a(f'v_mov_b32 v{r}, 0')
    a('s_waitcnt vmcnt(24)')
    for qt in range(2):
        for ks in range(6):
            q = QF + (qt * 6 + ks) * 4
            b = SA + 12 * qt
            a(f'v_mfma_f32_16x16x32_bf16 v[{b}:{b+3}], v[{KM+4*ks}:{KM+4*ks+3}], v[{q}:{q+3}], v[{b}:{b+3}]')
            k0 = KX + ks * 4
            a(f'v_mfma_f32_16x16x32_bf16 v[{b+4}:{b+7}], v[{k0}:{k0+3}], v[{q}:{q+3}], v[{b+4}:{b+7}]')
            if qt == 1:
                k1 = KX + (6 + ks) * 4
                a(f'v_mfma_f32_16x16x32_bf16 v[{b+8}:{b+11}], v[{k1}:{k1+3}], v[{q}:{q+3}], v[{b+8}:{b+11}]')
    a('s_nop 7')
    a('s_nop 1')
    for qt in range(2):
        b = SA + 12 * qt
        regs = list(range(b, b + (8 if qt == 0 else 12)))
        masks = {b + r: 's[46:47]' for r in range(4)}
        d = b + 4 if qt == 0 else b + 8
        for r in range(4):
            masks[d + r] = f's[{48+2*r}:{49+2*r}]'
        softmax_block(a, regs, masks, 56, 14, 15, 13)
        p = PF + 6 * qt
        a(f'v_cvt_pk_bf16_f32 v{p}, v{b+4}, v{b+5}')
        a(f'v_cvt_pk_bf16_f32 v{p+1}, v{b+6}, v{b+7}')
        if qt == 1:
            a(f'v_cvt_pk_bf16_f32 v{p+2}, v{b+8}, v{b+9}')
            a(f'v_cvt_pk_bf16_f32 v{p+3}, v{b+10}, v{b+11}')
        else:
            a(f'v_mov_b32 v{p+2}, 0')
            a(f'v_mov_b32 v{p+3}, 0')
        a(f'v_cvt_pk_bf16_f32 v{p+4}, v{b}, v{b+1}')
        a(f'v_cvt_pk_bf16_f32 v{p+5}, v{b+2}, v{b+3}')
    a('s_waitcnt vmcnt(0)')
    a("""
    v_lshlrev_b32 v16, 3, v4
    v_sub_u32 v17, v5, v16
    v_sub_u32 v18, v6, v16
    """)
    for qt in range(2):
        p = PF + 6 * qt
        for t in range(12):
            o = OA + 4 * t
            for r in range(4):
                a(f'v_mov_b32 v{o+r}, 0')
        a('s_nop 1')
        for t in range(12):
            o = OA + 4 * t
            a(f'v_mfma_f32_16x16x32_bf16 v[{o}:{o+3}], v[{VX+4*t}:{VX+4*t+3}], v[{p}:{p+3}], v[{o}:{o+3}]')
        for t in range(12):
            o = OA + 4 * t
            a(f'v_mfma_f32_16x16x16_bf16 v[{o}:{o+3}], v[{VM+2*t}:{VM+2*t+1}], v[{p+4}:{p+5}], v[{o}:{o+3}]')
        a('s_nop 7')
        a('s_nop 1')
        for t in range(12):
            o = OA + 4 * t
            tt = 24 + 2 * (t % 4)
            a(f'v_cvt_pk_bf16_f32 v{tt}, v{o}, v{o+1}')
            a(f'v_cvt_pk_bf16_f32 v{tt+1}, v{o+2}, v{o+3}')
            a(f'buffer_store_dwordx2 v[{tt}:{tt+1}], v{17+qt}, s[28:31], 0 offen offset:{t*32}{SC}')
        a('s_nop 1')

def gen_final(a):
    name = 'fin_kernel'
    kernel_header(a, name)
    NWG = S * DM // 8 // 256
    a(f"""
    s_cmp_ge_u32 s2, {NWG}
    s_cbranch_scc1 L_fin_done
    s_load_dwordx2 s[4:5], s[0:1], {KA_WS}
    s_load_dwordx2 s[6:7], s[0:1], {KA_X}
    s_load_dwordx2 s[8:9], s[0:1], {KA_OUT}
    s_waitcnt lgkmcnt(0)
    """)
    srd(a, 12, 6, S * DM * 2)
    srd(a, 16, 4, S * DM * 2, BO_OFF)
    srd(a, 20, 4, KSP * S * DM * 4, PART_OFF)
    srd(a, 24, 8, S * DM * 2)
    a(f"""
    s_lshl_b32 s3, s2, 8
    v_add_u32 v1, s3, v0
    v_lshlrev_b32 v2, 4, v1
    v_lshlrev_b32 v3, 5, v1
    buffer_load_dwordx4 v[8:11], v2, s[12:15], 0 offen
    buffer_load_dwordx4 v[12:15], v2, s[16:19], 0 offen
    """)
    PB = 48
    for k in range(KSP):
        a(f's_mov_b32 s30, {k*S*DM*4:#x}')
        a(f'buffer_load_dwordx4 v[{PB+8*k}:{PB+8*k+3}], v3, s[20:23], s30 offen')
        a(f'buffer_load_dwordx4 v[{PB+8*k+4}:{PB+8*k+7}], v3, s[20:23], s30 offen offset:16')
    a('s_waitcnt vmcnt(0)')
    for i in range(8):
        a(f'v_add_f32 v{16+i}, v{PB+i}, v{PB+8+i}')
        for k in range(2, KSP):
            a(f'v_add_f32 v{16+i}, v{16+i}, v{PB+8*k+i}')
        bf16r(a, 16 + i, 16 + i)
        if i % 2 == 0:
            a(f'v_lshlrev_b32 v40, 16, v{8+i//2}')
            a(f'v_lshlrev_b32 v41, 16, v{12+i//2}')
        else:
            a(f'v_and_b32 v40, 0xffff0000, v{8+i//2}')
            a(f'v_and_b32 v41, 0xffff0000, v{12+i//2}')
        a(f'v_add_f32 v{16+i}, v40, v{16+i}')
        bf16r(a, 16 + i, 16 + i)
        a(f'v_add_f32 v{16+i}, v{16+i}, v41')
    for i in range(4):
        a(f'v_cvt_pk_bf16_f32 v{44+i}, v{16+2*i}, v{17+2*i}')
    a('buffer_store_dwordx4 v[44:47], v2, s[24:27], 0 offen')
    a.label('L_fin_done')
    a('s_endpgm')
    return name, kernel_desc(name, 48 + 8 * KSP), (NWG, 256, 0)
```

```python
from common import *
import os
from k_attn import softmax_block, xgroup_reduce, SCALE, attn_body
from k_gemm import gemm_body, divmod_const

SPIN_MAX = 1 << 18

def gen_chain(a, SL=(0,0,0,0), STAMP=False):
    name = 'chain_kernel'
    kernel_header(a, name)
    NWG = 256
    NWORK = NWG - 149
    MEMF = 32
    ACC1 = 52
    OACC = 32
    KXF = 88
    VXF = 136
    QF = 184
    KMF = 208
    VMF = 232
    SACC = 184
    SACC = 76
    OF = 184
    PF = 208
    PACC = 216
    TMP = 24
    WSL = int(os.environ.get('WSL', '64'))
    NP = int(os.environ.get('NP', '1'))
    PA = [184, 204, 224][:NP-1]
    PB = [44, 56, 68][:NP-1]
    PC = [64, 96, 128][:int(os.environ.get('NPC', '1'))-1]
    AW1 = 0
    AWO = 180
    LDS_PART = 0
    LDS_SHARE = 36864
    LDS_KVX = LDS_SHARE + 9216
    LDS_BYTES = LDS_KVX + 24576
    a(f"""
    s_cmp_ge_u32 s2, {NWG}
    s_cbranch_scc1 L_ch_done
    s_load_dwordx2 s[4:5], s[0:1], {KA_WS}
    s_load_dwordx2 s[6:7], s[0:1], {KA_WQ}
    s_load_dwordx2 s[8:9], s[0:1], {KA_WK}
    s_load_dwordx2 s[10:11], s[0:1], {KA_WV}
    s_load_dwordx2 s[12:13], s[0:1], {KA_WO}
    s_load_dwordx2 s[84:85], s[0:1], {KA_DBG}
    s_load_dwordx2 s[86:87], s[0:1], {KA_WG}
    s_load_dwordx2 s[88:89], s[0:1], {KA_WU}
    v_lshrrev_b32 v1, 6, v0
    v_and_b32 v2, 63, v0
    s_nop 0
    v_readfirstlane_b32 s40, v1        ; wave
    s_and_b32 s41, s2, 7
    s_lshl_b32 s41, s41, 2
    s_lshr_b32 s42, s2, 5
    s_add_u32 s41, s41, s42
    s_lshr_b32 s42, s2, 3
    s_and_b32 s42, s42, 3
    s_waitcnt lgkmcnt(0)
    """)
    srd(a, 16, 4, 4 * MEMR_STRIDE, MEMR_OFF)
    srd(a, 20, 4, 4 * QKVR_STRIDE, QKVR_OFF)
    srd(a, 24, 4, 4 * PR_STRIDE, PR_OFF)
    srd(a, 28, 4, NSEG * H * 6144, KVM_OFF)
    srd(a, 32, 4, S * HD * 2, KX_OFF)
    srd(a, 36, 4, S * HD * 2, VF_OFF)
    srd(a, 92, 4, 4096, CNT_OFF)
    a(f"""
    v_and_b32 v3, 15, v2               ; l&15
    v_lshrrev_b32 v4, 4, v2            ; g4
    v_and_b32 v5, 7, v2                ; l&7
    s_cmp_ge_u32 s2, 149
    s_cbranch_scc1 L_ch_worker
    s_cmp_eq_u32 s2, 148
    s_cbranch_scc1 L_ch_monitor
    s_cmp_ge_u32 s2, 128
    s_cbranch_scc1 L_ch_reducer
    """)
    a(f"""
    v_lshrrev_b32 v6, 1, v2            ; row 0..31
    v_and_b32 v7, 1, v2
    s_mul_i32 s43, s40, 160
    v_add_u32 v8, s43, v6
    s_mov_b32 s60, {HD*2}
    v_mul_lo_u32 v8, v8, s60
    v_lshl_add_u32 v8, v7, 4, v8
    s_mul_i32 s43, s40, 9216
    v_lshlrev_b32 v9, 4, v2
    v_add_u32 v9, s43, v9
    v_lshrrev_b32 v10, 2, v3           ; r
    v_and_b32 v11, 3, v2               ; c
    v_lshl_add_u32 v12, v4, 3, v10     ; 8g + r
    v_lshlrev_b32 v12, 5, v12
    v_lshl_add_u32 v12, v11, 3, v12
    v_add_u32 v12, s43, v12
    v_lshl_add_u32 v13, v4, 2, v10     ; 4g + r
    v_lshlrev_b32 v13, 5, v13
    v_lshl_add_u32 v13, v11, 3, v13
    v_add_u32 v13, s43, v13
    s_mov_b32 s46, {DM*HD*2:#x}
    s_mov_b32 s47, 0x20000
    """)
    STG = 32
    for ks in range(5):
        for t in range(9):
            a(f"""
            s_mul_i32 s48, s42, 9
            s_add_u32 s48, s48, {t}
            s_cmp_ge_u32 s48, 12
            s_cselect_b32 s44, s8, s6
            s_cselect_b32 s45, s9, s7
            s_cselect_b32 s49, 12, 0
            s_cmp_ge_u32 s48, 24
            s_cselect_b32 s44, s10, s44
            s_cselect_b32 s45, s11, s45
            s_cselect_b32 s49, 24, s49
            s_sub_u32 s48, s48, s49
            s_lshl_b32 s48, s48, 5             ; *32 bytes
            s_mul_i32 s49, s41, 384
            s_add_u32 s48, s48, s49
            s_add_u32 s48, s48, {ks*32*HD*2:#x}
            buffer_load_dwordx4 v[{STG+4*t}:{STG+4*t+3}], v8, s[44:47], s48 offen
            """)
        a('s_waitcnt vmcnt(0)')
        for t in range(9):
            a(f'ds_write_b128 v9, v[{STG+4*t}:{STG+4*t+3}] offset:{t*1024}')
        a('s_waitcnt lgkmcnt(0)')
        for t in range(9):
            a(f'ds_read_b64_tr_b16 v[{STG+4*t}:{STG+4*t+1}], v12 offset:{t*1024}')
            a(f'ds_read_b64_tr_b16 v[{STG+4*t+2}:{STG+4*t+3}], v12 offset:{t*1024+128}')
        a('s_waitcnt lgkmcnt(0)')
        for t in range(9):
            for r in range(4):
                a(f'v_accvgpr_write_b32 a{AW1+(t*5+ks)*4+r}, v{STG+4*t+r}')
    a(f"""
    s_mul_i32 s50, s40, 3
    s_cmp_eq_u32 s40, 3
    s_cselect_b32 s50, 8, s50
    s_mul_i32 s48, s41, 192
    v_add_u32 v8, s48, v6
    v_mul_u32_u24 v8, {DM*2}, v8
    v_lshl_add_u32 v8, v7, 4, v8
    s_mov_b32 s44, s12
    s_mov_b32 s45, s13
    s_mov_b32 s46, {HD*DM*2:#x}
    """)
    for half in range(2):
        items = [(tt, ks2) for tt in range(3) for ks2 in range(6)][half*9:(half+1)*9]
        for i, (tt, ks2) in enumerate(items):
            a(f"""
            s_add_u32 s48, s50, {tt}
            s_min_u32 s48, s48, 9
            s_lshl_b32 s48, s48, 5
            s_mul_i32 s49, s42, 320
            s_add_u32 s48, s48, s49
            s_add_u32 s48, s48, {ks2*32*DM*2}
            buffer_load_dwordx4 v[{STG+4*i}:{STG+4*i+3}], v8, s[44:47], s48 offen
            """)
        a('s_waitcnt vmcnt(0)')
        for i in range(9):
            a(f'ds_write_b128 v9, v[{STG+4*i}:{STG+4*i+3}] offset:{i*1024}')
        a('s_waitcnt lgkmcnt(0)')
        for i in range(9):
            a(f'ds_read_b64_tr_b16 v[{STG+4*i}:{STG+4*i+1}], v13 offset:{i*1024}')
            a(f'ds_read_b64_tr_b16 v[{STG+4*i+2}:{STG+4*i+3}], v13 offset:{i*1024+512}')
        a('s_waitcnt lgkmcnt(0)')
        for i, (tt, ks2) in enumerate(items):
            for r in range(4):
                a(f'v_accvgpr_write_b32 a{AWO+(tt*6+ks2)*4+r}, v{STG+4*i+r}')
    a(f"""
    v_lshl_add_u32 v6, v4, 3, v5
    v_lshlrev_b32 v6, 4, v6
    v_mov_b32 v7, v6
    s_mul_i32 s43, s40, 2560
    v_add_u32 v6, s43, v6
    v_add_u32 v7, {LDS_SHARE}, v7
    v_mov_b32 v8, v9
    v_lshrrev_b32 v10, 4, v0           ; t
    v_and_b32 v11, 15, v0              ; i
    s_mul_i32 s43, s42, 9
    v_add_u32 v12, s43, v10            ; T global
    v_lshrrev_b32 v13, 3, v11
    v_lshlrev_b32 v13, 5, v13
    v_and_b32 v14, 7, v11
    v_add_u32 v13, v13, v14            ; T-form l1
    v_cmp_le_u32 vcc, 24, v12
    s_nop 1
    v_cndmask_b32 v13, v13, v11, vcc
    v_lshlrev_b32 v13, 4, v13
    v_lshl_add_u32 v9, v10, 10, v13
    s_mul_i32 s43, s41, 9216
    s_mul_i32 s48, s42, 2304
    s_add_u32 s43, s43, s48
    v_lshlrev_b32 v10, 4, v0
    v_add_u32 v10, s43, v10
    s_mul_i32 s43, s41, 6144
    s_add_u32 s43, s43, s48
    s_sub_u32 s43, s43, 3072
    v_lshlrev_b32 v11, 4, v0
    v_add_u32 v11, s43, v11
    v_cmp_gt_u32 vcc, 144, v0
    s_mov_b64 s[52:53], vcc
    v_cmp_le_u32 vcc, 12, v12
    s_and_b64 s[54:55], vcc, s[52:53]
    s_mul_i32 s43, s41, 9216
    s_mul_i32 s48, s40, 2304
    s_add_u32 s43, s43, s48
    v_lshlrev_b32 v12, 4, v2
    v_min_u32 v13, 15, v2
    v_lshlrev_b32 v13, 4, v13
    v_add_u32 v13, 2048, v13
    v_add_u32 v15, s48, v12
    v_add_u32 v15, {LDS_SHARE}, v15
    v_add_u32 v16, s48, v13
    v_add_u32 v16, {LDS_SHARE}, v16
    v_add_u32 v12, s43, v12
    v_add_u32 v13, s43, v13
    v_and_b32 v14, 1, v4
    v_lshlrev_b32 v14, 3, v14
    v_lshl_add_u32 v14, v3, 4, v14
    v_add_u32 v14, {LDS_SHARE+6144}, v14
    s_mul_i32 s43, s42, 20
    s_lshl_b32 s48, s50, 1
    s_add_u32 s43, s43, s48
    v_lshrrev_b32 v17, 1, v4
    v_add_u32 v17, s43, v17
    v_lshlrev_b32 v17, 13, v17
    v_and_b32 v18, 1, v4
    v_lshl_add_u32 v18, v18, 3, v5
    v_lshl_add_u32 v17, v18, 4, v17
    s_lshl_b32 s43, s41, 8
    v_add_u32 v17, s43, v17
    v_cmp_gt_u32 s[56:57], 8, v3
    v_cmp_gt_u32 s[58:59], 2, v4       ; g4<2 mask
    s_mov_b32 s60, 12288
    v_mul_lo_u32 v18, v3, s60
    s_mul_i32 s43, s41, 384
    v_add_u32 v18, s43, v18
    v_lshl_add_u32 v18, v4, 4, v18
    v_add_u32 v19, {16*12288:#x}, v18
    s_mul_i32 s43, s41, 12288
    v_lshlrev_b32 v20, 4, v2
    v_add_u32 v20, s43, v20
    v_add_u32 v21, 4096, v20
    v_add_u32 v22, 8192, v20
    s_lshl_b32 s43, s2, 13
    v_lshlrev_b32 v23, 4, v2
    v_add_u32 v23, s43, v23
    s_mov_b32 s61, {SCALE!r}
    s_lshl_b32 s75, s41, 2
    s_add_u32 s75, s75, s42
    s_mov_b32 s62, 0                   ; step
    s_mov_b32 s65, 0
    """)
    a(f"""
    s_cmp_ge_u32 s40, 2
    s_cselect_b32 s44, s36, s32
    s_cselect_b32 s45, s37, s33
    s_mov_b32 s46, {S*HD*2:#x}
    s_mov_b32 s47, 0x20000
    s_cselect_b32 s48, 1024, 64
    s_mov_b32 s49, {384*1024}
    s_cmp_eq_u32 s40, 3
    s_cselect_b32 s63, 6144, 0
    s_cmp_eq_u32 s40, 1
    s_cselect_b64 vcc, -1, 0
    s_nop 1
    v_cndmask_b32 v18, v18, v19, vcc
    s_cmp_ge_u32 s40, 2
    s_cselect_b64 vcc, -1, 0
    s_nop 1
    v_cndmask_b32 v18, v18, v20, vcc
    s_mul_i32 s64, s40, 6144
    s_add_u32 s64, s64, {LDS_KVX}
    v_lshlrev_b32 v19, 4, v2
    v_add_u32 v19, {LDS_KVX}, v19
    """)
    def prefetch_kv():
        a('s_mov_b32 s66, s63')
        for i in range(6):
            a(f's_add_u32 m0, s64, {i*1024}')
            if i: a('s_add_u32 s66, s66, s48')
            else: a('s_nop 0')
            a('buffer_load_dwordx4 v18, s[44:47], s66 offen sc1 lds')
        a('s_add_u32 s63, s63, s49')
    def read_kv():
        for i in range(12):
            a(f'ds_read_b128 v[{KXF+4*i}:{KXF+4*i+3}], v19 offset:{i*1024}')
        for i in range(12):
            a(f'ds_read_b128 v[{VXF+4*i}:{VXF+4*i+3}], v19 offset:{(12+i)*1024}')
    def prefetch_k():
        for kt in range(2):
            for ks in range(6):
                r = KXF + (kt * 6 + ks) * 4
                a(f'buffer_load_dwordx4 v[{r}:{r+3}], v{18+kt}, s[32:35], s63 offen offset:{ks*64} sc1')
    def prefetch_v():
        for t in range(12):
            r = VXF + 4 * t
            a(f'buffer_load_dwordx4 v[{r}:{r+3}], v{20+t//4}, s[36:39], s64 offen offset:{(t%4)*1024} sc1')
    STAMP_OFF = WS_USED
    if STAMP:
        srd(a, 76, 4, 1 << 20, STAMP_OFF)
        a('s_lshl_b32 s43, s2, 2')
        a('s_add_u32 s43, s43, s40')
        a('s_lshl_b32 s43, s43, 7')
        a('v_mov_b32 v1, s43')
    def stamp(idx, step=32):
        if not STAMP: return
        lbl = f'L_ch_st{idx}'
        a(f's_cmp_lg_u32 s62, {step}')
        a(f's_cbranch_scc1 {lbl}')
        a('s_memrealtime s[80:81]')
        a('s_waitcnt lgkmcnt(0)')
        a('v_mov_b32 v30, s80')
        a('v_mov_b32 v31, s81')
        a('s_mov_b64 s[82:83], exec')
        a('s_mov_b64 exec, 1')
        a(f'buffer_store_dwordx2 v[30:31], v1, s[76:79], 0 offen offset:{idx*8}')
        a('s_mov_b64 exec, s[82:83]')
        a.label(lbl)
    def sleep(n):
        if n: a(f's_sleep {n}')
    def segsig(tag):
        a(f"""
        s_cmp_lg_u32 s40, 0
        s_cbranch_scc1 L_ch_nosig{tag}
        s_lshl_b32 s66, s75, 2
        s_add_u32 s66, s66, 256
        v_mov_b32 v24, s66
        s_add_u32 s66, s62, 1
        v_mov_b32 v25, s66
        s_mov_b64 exec, 1
        buffer_store_dword v25, v24, s[92:95], 0 offen sc1
        s_mov_b64 exec, -1
        """)
        a.label(f'L_ch_nosig{tag}')
    def wait_kv(tag, seg_sreg):
        a(f"""
        s_lshr_b32 s66, s{seg_sreg}, 3
        s_lshl_b32 s66, s66, 2
        v_mov_b32 v24, s66
        s_mov_b32 s74, 0
        """)
        a.label(f'L_ch_kv{tag}')
        a(f"""
        buffer_load_dword v25, v24, s[92:95], 0 offen sc1
        s_waitcnt vmcnt(0)
        v_readfirstlane_b32 s66, v25
        s_add_u32 s74, s74, 1
        s_cmp_ge_u32 s74, {SPIN_MAX*4}
        s_cbranch_scc1 L_ch_done
        s_cmp_ge_u32 s66, 48
        s_cbranch_scc1 L_ch_kvok{tag}
        s_sleep 8
        s_branch L_ch_kv{tag}
        """)
        a.label(f'L_ch_kvok{tag}')
    XF = int(os.environ.get('XF', '1'))
    a('s_mov_b32 s51, 0')
    if XF:
        a(f"""
        s_getreg_b32 s66, hwreg(HW_REG_XCC_ID)
        s_add_u32 s66, s66, 1
        v_mov_b32 v25, s66
        s_lshl_b32 s67, s75, 2
        s_add_u32 s67, s67, 1024
        v_mov_b32 v24, s67
        s_mov_b64 exec, 1
        buffer_store_dword v25, v24, s[92:95], 0 offen sc1
        s_mov_b64 exec, -1
        s_lshl_b32 s67, s41, 4
        s_add_u32 s67, s67, 1024
        v_and_b32 v24, 3, v2
        v_lshl_add_u32 v24, v24, 2, s67
        s_mov_b32 s74, 0
        """)
        a.label('L_ch_xw')
        a(f"""
        buffer_load_dword v25, v24, s[92:95], 0 offen sc1
        s_waitcnt vmcnt(0)
        v_cmp_eq_u32 vcc, 0, v25
        s_add_u32 s74, s74, 1
        s_cmp_ge_u32 s74, {SPIN_MAX}
        s_cbranch_scc1 L_ch_done
        s_nop 1
        s_cbranch_vccnz L_ch_xw
        v_cmp_ne_u32 vcc, s66, v25
        s_nop 4
        s_cmp_eq_u64 vcc, 0
        s_cselect_b32 s51, 1, 0
        """)
    wait_kv(0, 62)
    prefetch_kv()
    a('s_barrier')
    a.label('L_ch_step')
    a(f"""
    s_and_b32 s66, s62, 3
    s_lshl_b32 s67, s66, 14
    s_mul_i32 s68, s66, {QKVR_STRIDE}
    s_mul_i32 s69, s66, {PR_STRIDE}
    s_add_u32 s66, s62, 2
    s_and_b32 s66, s66, 3
    s_mul_i32 s70, s66, {QKVR_STRIDE}
    s_mul_i32 s71, s66, {PR_STRIDE}
    s_add_u32 s66, s62, 1
    s_and_b32 s66, s66, 3
    s_lshl_b32 s72, s66, 14
    s_add_u32 s66, s62, 3
    s_and_b32 s66, s66, 3
    s_lshl_b32 s73, s66, 14
    s_mov_b32 s74, 0
    """)
    if SL[3]:
        a('s_cmp_eq_u32 s62, 0')
        a('s_cbranch_scc1 L_ch_pollA')
        sleep(SL[3])
    a.label('L_ch_pollA')
    def anysent(regs, t):
        a(f'v_max3_u32 v{t}, v{regs[0]}, v{regs[1]}, v{regs[2]}')
        i = 3
        while i < len(regs):
            if i + 1 < len(regs):
                a(f'v_max3_u32 v{t}, v{t}, v{regs[i]}, v{regs[i+1]}'); i += 2
            else:
                a(f'v_max_u32 v{t}, v{t}, v{regs[i]}'); i += 1
        a(f'v_cmp_eq_u32 vcc, -1, v{t}')
    def spin(lbl):
        a(f"""
        s_add_u32 s74, s74, 1
        s_cmp_ge_u32 s74, {SPIN_MAX}
        s_cbranch_scc1 L_ch_done
        s_nop 1
        s_cbranch_vccnz {lbl}
        """)
    def ppoll(tag, loads, base0, alts, n, nl, t):
        sets = [base0] + list(alts)
        K = len(sets)
        for k in range(K - 1):
            loads(sets[k])
        a.label(f'L_ch_poll{tag}')
        for k in range(K):
            cur = sets[k]; nxt = sets[(k + K - 1) % K]
            loads(nxt)
            a(f's_waitcnt vmcnt({nl*(K-1)})')
            anysent(list(range(cur, cur + n)), t)
            a('s_nop 1')
            a(f's_cbranch_vccz L_ch_ok{tag}{k}')
        a(f"""
        s_add_u32 s74, s74, 1
        s_cmp_ge_u32 s74, {SPIN_MAX}
        s_cbranch_scc1 L_ch_done
        s_branch L_ch_poll{tag}
        """)
        for k in range(K - 1, 0, -1):
            a.label(f'L_ch_ok{tag}{k}')
            for r in range(n):
                a(f'v_mov_b32 v{base0+r}, v{sets[k]+r}')
            a(f's_branch L_ch_ok{tag}0')
        a.label(f'L_ch_ok{tag}0')
    def ldA(b):
        for ks in range(5):
            a(f'buffer_load_dwordx4 v[{b+4*ks}:{b+4*ks+3}], v6, s[16:19], s67 offen offset:{ks*512} sc1')
    ppoll('A_', ldA, MEMF, PA, 20, 5, TMP)
    stamp(6, 33); stamp(0)
    a('s_cmp_eq_u32 s42, 2')
    a('s_cbranch_scc1 L_ch_p1_mix')
    a('s_cmp_eq_u32 s42, 3')
    a('s_cbranch_scc1 L_ch_p1_n')
    def p1(nfrom):
        for ks in range(5):
            for t in range(9):
                acc = ACC1 + 4 * t
                w = f'a[{AW1+(t*5+ks)*4}:{AW1+(t*5+ks)*4+3}]'
                m = f'v[{MEMF+4*ks}:{MEMF+4*ks+3}]'
                c = '0' if ks == 0 else f'v[{acc}:{acc+3}]'
                if t < nfrom:
                    a(f'v_mfma_f32_16x16x32_bf16 v[{acc}:{acc+3}], {w}, {m}, {c}')
                else:
                    a(f'v_mfma_f32_16x16x32_bf16 v[{acc}:{acc+3}], {m}, {w}, {c}')
    p1(9)
    a('s_branch L_ch_p1_done')
    a.label('L_ch_p1_mix')
    p1(6)
    a('s_branch L_ch_p1_done')
    a.label('L_ch_p1_n')
    p1(0)
    a.label('L_ch_p1_done')
    stamp(14)
    a('s_nop 7')
    a('s_nop 1')
    for t in range(9):
        a(f'ds_write_b128 v8, v[{ACC1+4*t}:{ACC1+4*t+3}] offset:{t*1024}')
    a('s_waitcnt vmcnt(0) lgkmcnt(0)' if NP > 1 else 's_waitcnt lgkmcnt(0)')
    a('s_barrier')
    stamp(15)
    a('s_mov_b64 exec, s[52:53]')
    a('s_cbranch_execz L_ch_nopub')
    R = MEMF
    for w in range(4):
        a(f'ds_read_b128 v[{R+8*w}:{R+8*w+3}], v9 offset:{w*9216}')
        a(f'ds_read_b128 v[{R+8*w+4}:{R+8*w+7}], v9 offset:{w*9216+256}')
    a('s_waitcnt lgkmcnt(0)')
    for j in range(8):
        a(f'v_add_f32 v{R+j}, v{R+j}, v{R+8+j}')
        a(f'v_add_f32 v{R+16+j}, v{R+16+j}, v{R+24+j}')
        a(f'v_add_f32 v{R+j}, v{R+j}, v{R+16+j}')
    for j in range(4):
        a(f'v_cvt_pk_bf16_f32 v{R+8+j}, v{R+2*j}, v{R+2*j+1}')
        a(f'v_min_u32 v{R+8+j}, 0xfffffffe, v{R+8+j}')
    a('s_cmp_eq_u32 s51, 1')
    a('s_cbranch_scc1 L_ch_pubf')
    a(f'buffer_store_dwordx4 v[{R+8}:{R+11}], v10, s[20:23], s68 offen sc1')
    a('s_branch L_ch_pubd')
    a.label('L_ch_pubf')
    a(f'buffer_store_dwordx4 v[{R+8}:{R+11}], v10, s[20:23], s68 offen')
    a.label('L_ch_pubd')
    a('s_mov_b64 exec, s[54:55]')
    a('s_cbranch_execz L_ch_nopub')
    a(f'buffer_store_dwordx4 v[{R+8}:{R+11}], v11, s[28:31], s65 offen sc1')
    a.label('L_ch_nopub')
    a('s_mov_b64 exec, -1')
    stamp(1)
    a(f's_cmp_eq_u32 s62, {NSEG-1}')
    a('s_cbranch_scc1 L_ch_last')
    read_kv()
    a('s_mov_b32 s74, 0')
    sleep(SL[1])
    def ldB(b):
        a(f'buffer_load_dwordx4 v[{b}:{b+3}], v12, s[20:23], s68 offen sc1')
        a(f'buffer_load_dwordx4 v[{b+4}:{b+7}], v12, s[20:23], s68 offen offset:1024 sc1')
        a(f'buffer_load_dwordx4 v[{b+8}:{b+11}], v13, s[20:23], s68 offen sc1')
    ppoll('B_', ldB, R, PB, 12, 3, TMP)
    stamp(2)
    a(f'ds_write_b128 v15, v[{R}:{R+3}]')
    a(f'ds_write_b128 v15, v[{R+4}:{R+7}] offset:1024')
    a(f'ds_write_b128 v16, v[{R+8}:{R+11}]')
    a('s_waitcnt lgkmcnt(0)')
    a('s_barrier')
    stamp(7)
    for ks in range(6):
        a(f'ds_read_b128 v[{QF+4*ks}:{QF+4*ks+3}], v7 offset:{ks*512}')
        a(f'ds_read_b128 v[{KMF+4*ks}:{KMF+4*ks+3}], v7 offset:{3072+ks*512}')
    a('s_waitcnt lgkmcnt(0)')
    for t in range(12):
        a(f'ds_read_b64 v[{VMF+2*t}:{VMF+2*t+1}], v14 offset:{t*256}')
    for ks in range(6):
        q = f'v[{QF+4*ks}:{QF+4*ks+3}]'
        c = (lambda b: '0') if ks == 0 else (lambda b: f'v[{b}:{b+3}]')
        a(f'v_mfma_f32_16x16x32_bf16 v[{SACC}:{SACC+3}], v[{KMF+4*ks}:{KMF+4*ks+3}], {q}, {c(SACC)}')
        a(f'v_mfma_f32_16x16x32_bf16 v[{SACC+4}:{SACC+7}], v[{KXF+4*ks}:{KXF+4*ks+3}], {q}, {c(SACC+4)}')
        a(f'v_mfma_f32_16x16x32_bf16 v[{SACC+8}:{SACC+11}], v[{KXF+24+4*ks}:{KXF+24+4*ks+3}], {q}, {c(SACC+8)}')
    a('v_mov_b32 v26, 0xce6e6b28')
    a('s_nop 7')
    a('s_nop 1')
    stamp(8)
    stamp(9)
    softmax_block(a, list(range(SACC, SACC + 12)), {SACC + r: 's[58:59]' for r in range(4)}, 61, 24, 25, 26)
    a(f'v_cvt_pk_bf16_f32 v{PF}, v{SACC+4}, v{SACC+5}')
    a(f'v_cvt_pk_bf16_f32 v{PF+1}, v{SACC+6}, v{SACC+7}')
    a(f'v_cvt_pk_bf16_f32 v{PF+2}, v{SACC+8}, v{SACC+9}')
    a(f'v_cvt_pk_bf16_f32 v{PF+3}, v{SACC+10}, v{SACC+11}')
    a(f'v_cvt_pk_bf16_f32 v{PF+4}, v{SACC}, v{SACC+1}')
    a(f'v_cvt_pk_bf16_f32 v{PF+5}, v{SACC+2}, v{SACC+3}')
    stamp(10)
    a('s_waitcnt vmcnt(0) lgkmcnt(0)' if NP > 1 else 's_waitcnt lgkmcnt(0)')
    a('s_nop 0')
    for t in range(12):
        o = OACC + 4 * t
        a(f'v_mfma_f32_16x16x32_bf16 v[{o}:{o+3}], v[{VXF+4*t}:{VXF+4*t+3}], v[{PF}:{PF+3}], 0')
    for t in range(12):
        o = OACC + 4 * t
        a(f'v_mfma_f32_16x16x16_bf16 v[{o}:{o+3}], v[{VMF+2*t}:{VMF+2*t+1}], v[{PF+4}:{PF+5}], v[{o}:{o+3}]')
    a('s_nop 7')
    a('s_nop 1')
    stamp(11)
    stamp(12)
    for t in range(12):
        o = OACC + 4 * t
        a(f'v_cvt_pk_bf16_f32 v{OF+2*t}, v{o}, v{o+1}')
        a(f'v_cvt_pk_bf16_f32 v{OF+2*t+1}, v{o+2}, v{o+3}')
    a('s_nop 1')
    for ks2 in range(6):
        for tt in range(3):
            p = PACC + 4 * tt
            w = AWO + (tt * 6 + ks2) * 4
            c = '0' if ks2 == 0 else f'v[{p}:{p+3}]'
            a(f'v_mfma_f32_16x16x32_bf16 v[{p}:{p+3}], a[{w}:{w+3}], v[{OF+4*ks2}:{OF+4*ks2+3}], {c}')
    a('s_nop 7')
    a('s_nop 1')
    stamp(13)
    for r in range(PACC, PACC + 12):
        a(f'v_min_u32 v{r}, 0xfffffffe, v{r}')
    for r in range(28, 32):
        a(f'v_mov_b32 v{r}, -1')
    a('s_mov_b64 exec, s[56:57]')
    a(f'buffer_store_dwordx4 v[{PACC}:{PACC+3}], v17, s[24:27], s69 offen sc1')
    a('s_add_u32 s66, s69, 16384')
    a(f'buffer_store_dwordx4 v[{PACC+4}:{PACC+7}], v17, s[24:27], s66 offen sc1')
    a('s_cmp_ge_u32 s40, 2')
    a('s_cbranch_scc1 L_ch_no3')
    a('s_add_u32 s66, s69, 32768')
    a(f'buffer_store_dwordx4 v[{PACC+8}:{PACC+11}], v17, s[24:27], s66 offen sc1')
    a('s_add_u32 s66, s71, 32768')
    a('buffer_store_dwordx4 v[28:31], v17, s[24:27], s66 offen sc1')
    a.label('L_ch_no3')
    a('buffer_store_dwordx4 v[28:31], v17, s[24:27], s71 offen sc1')
    a('s_add_u32 s66, s71, 16384')
    a('buffer_store_dwordx4 v[28:31], v17, s[24:27], s66 offen sc1')
    a('s_mov_b64 exec, s[52:53]')
    a('s_cbranch_execz L_ch_noclr')
    a('s_cmp_eq_u32 s51, 1')
    a('s_cbranch_scc1 L_ch_clrf')
    a('buffer_store_dwordx4 v[28:31], v10, s[20:23], s70 offen sc1')
    a('s_branch L_ch_noclr')
    a.label('L_ch_clrf')
    a('buffer_store_dwordx4 v[28:31], v10, s[20:23], s70 offen')
    a.label('L_ch_noclr')
    a('s_mov_b64 exec, -1')
    stamp(3)
    a('s_add_u32 s90, s62, 1')
    a('s_and_b32 s66, s90, 7')
    a('s_cmp_lg_u32 s66, 0')
    a('s_cbranch_scc1 L_ch_kvok1')
    wait_kv(1, 90)
    prefetch_kv()
    a.label('L_ch_next')
    stamp(5)
    a(f"""
    s_add_u32 s62, s62, 1
    s_add_u32 s65, s65, {32*6144}
    s_branch L_ch_step
    """)
    a.label('L_ch_last')
    a('s_waitcnt vmcnt(0)')
    a('s_barrier')
    segsig('b')
    a('s_branch L_ch_done')
    a.label('L_ch_worker')
    base = dict(BM=256, BN=256, WR=2, WC=2, a_src=('ws', XN_OFF, S*DM*2), lda=DM, nk=DM//32, agpr=True, tiles=(8, 24, 1))
    cK = dict(base, name='wk', w_srcs=[KA_WK], ldw=HD, w_bytes=DM*HD*2, form='T', epi='ffn2', ldo=HD, out_off=KX_OFF, out_bytes=S*HD*2, sc1=True)
    cV = dict(base, name='wv', w_srcs=[KA_WV], ldw=HD, w_bytes=DM*HD*2, form='N', epi='v', sc1=True)
    cQ = dict(base, name='wq', w_srcs=[KA_WQ], ldw=HD, w_bytes=DM*HD*2, form='T', epi='ffn2', ldo=HD, out_off=QX_OFF, out_bytes=S*HD*2)
    cF = dict(base, name='wf', nb=2, w_srcs=[KA_WG, KA_WU], ldw=FF, w_bytes=DM*FF*2, form='T', epi='ffn1', ldo=FF, out_off=H_OFF, out_bytes=S*FF*2, tiles=(8, 12, 1))
    cQ['sc1'] = True; cF['sc1'] = True
    cG = dict(name='wg', BM=128, BN=128, WR=2, WC=2, a_src=('ws', H_OFF, S*FF*2), lda=FF, nk=FF//32, a_sc1=True,
              w_srcs=[KA_WD], ldw=DM, w_bytes=FF*DM*2, tiles=(16, 5, 1), form='T', epi='ffn2', ldo=DM, out_off=BO_OFF, out_bytes=S*DM*2, nst=8)
    cO = dict(name='wo', BM=128, BN=128, WR=2, WC=2, a_src=('ws', O_OFF, S*HD*2), lda=HD, nk=HD//KSP//32, ksplit_len=HD//KSP, a_sc1=True,
              w_srcs=[KA_WO], ldw=DM, w_bytes=HD*DM*2, tiles=(16, 5, KSP), form='T', epi='part', ldo=DM, nst=8)
    a(f"""
    s_load_dwordx2 s[76:77], s[0:1], {KA_WD}
    s_mov_b32 s78, s12
    s_mov_b32 s79, s13                 ; Wo
    s_waitcnt lgkmcnt(0)
    s_mov_b32 s44, s40
    s_mov_b32 s80, s40
    s_mov_b32 s96, s6
    s_mov_b32 s97, s7                  ; Wq
    s_mov_b32 s98, s8
    s_mov_b32 s99, s9                  ; Wk
    s_mov_b32 s100, s10
    s_mov_b32 s101, s11                ; Wv
    s_sub_u32 s91, s2, 149
    s_mov_b32 s42, 0
    """)
    lds_w = 0
    a.label('L_w_kv')
    a('s_cmp_ge_u32 s91, 384')
    a('s_cbranch_scc1 L_w_q0')
    divmod_const(a, 91, 41, 40, 48)
    a('s_cmp_ge_u32 s40, 24')
    a('s_cbranch_scc1 L_w_v')
    a('s_mov_b32 s6, s98'); a('s_mov_b32 s7, s99')
    _, lds_w = gemm_body(a, cK, 'L_wk')
    a('s_branch L_w_kvsig')
    a.label('L_w_v')
    a('s_sub_u32 s40, s40, 24')
    a('s_mov_b32 s6, s100'); a('s_mov_b32 s7, s101')
    gemm_body(a, cV, 'L_wv')
    a.label('L_w_kvsig')
    a(f"""
    s_waitcnt vmcnt(0)
    s_barrier
    s_cmp_lg_u32 s44, 0
    s_cbranch_scc1 L_w_nosig
    s_lshl_b32 s66, s41, 2
    v_mov_b32 v24, s66
    v_mov_b32 v25, 1
    s_mov_b64 exec, 1
    buffer_atomic_add v25, v24, s[92:95], 0 offen sc1
    s_mov_b64 exec, -1
    """)
    a.label('L_w_nosig')
    a(f's_add_u32 s91, s91, {NWORK}')
    a('s_branch L_w_kv')
    def wsig(idx_sreg, base, tag):
        a(f"""
        s_waitcnt vmcnt(0)
        s_barrier
        s_cmp_lg_u32 s44, 0
        s_cbranch_scc1 L_w_ns{tag}
        s_lshl_b32 s66, s{idx_sreg}, 2
        s_add_u32 s66, s66, {base*4}
        v_mov_b32 v24, s66
        v_mov_b32 v25, 1
        s_mov_b64 exec, 1
        buffer_atomic_add v25, v24, s[92:95], 0 offen sc1
        s_mov_b64 exec, -1
        """)
        a.label(f'L_w_ns{tag}')
    def wwait(idx_sreg, base, target, tag):
        a(f"""
        s_cmp_lg_u32 s80, 0
        s_cbranch_scc1 L_w_ok{tag}
        s_lshl_b32 s66, s{idx_sreg}, 2
        s_add_u32 s66, s66, {base*4}
        v_mov_b32 v24, s66
        s_mov_b32 s74, 0
        """)
        a.label(f'L_w_wt{tag}')
        a(f"""
        buffer_load_dword v25, v24, s[92:95], 0 offen sc1
        s_waitcnt vmcnt(0)
        v_readfirstlane_b32 s66, v25
        s_add_u32 s74, s74, 1
        s_cmp_ge_u32 s74, {SPIN_MAX*4}
        s_cbranch_scc1 L_ch_done
        s_cmp_ge_u32 s66, {target}
        s_cbranch_scc1 L_w_ok{tag}
        s_sleep {WSL}
        s_branch L_w_wt{tag}
        """)
        a.label(f'L_w_ok{tag}')
        a('s_barrier')
    a.label('L_w_q0')
    a('s_sub_u32 s91, s91, 384')
    a.label('L_w_q')
    a('s_cmp_ge_u32 s91, 192')
    a('s_cbranch_scc1 L_w_f0')
    divmod_const(a, 91, 41, 40, 24)
    a('s_mov_b32 s6, s96'); a('s_mov_b32 s7, s97')
    gemm_body(a, cQ, 'L_wq')
    wsig(41, 8, 'q')
    a(f's_add_u32 s91, s91, {NWORK}')
    a('s_branch L_w_q')
    a.label('L_w_f0')
    a('s_sub_u32 s91, s91, 192')
    a.label('L_w_f')
    a('s_cmp_ge_u32 s91, 96')
    a('s_cbranch_scc1 L_w_g0')
    divmod_const(a, 91, 41, 40, 12)
    a('s_mov_b32 s6, s86'); a('s_mov_b32 s7, s87')
    a('s_mov_b32 s8, s88'); a('s_mov_b32 s9, s89')
    gemm_body(a, cF, 'L_wf')
    wsig(41, 16, 'f')
    a(f's_add_u32 s91, s91, {NWORK}')
    a('s_branch L_w_f')
    a.label('L_w_g0')
    a('s_sub_u32 s91, s91, 96')
    a.label('L_w_g')
    a('s_cmp_ge_u32 s91, 80')
    a('s_cbranch_scc1 L_w_a0')
    divmod_const(a, 91, 41, 40, 5)
    a('s_lshr_b32 s90, s41, 1')
    wwait(90, 16, 12, 'g')
    a('s_mov_b32 s6, s76'); a('s_mov_b32 s7, s77')
    a('s_mov_b32 s42, 0')
    gemm_body(a, cG, 'L_wg')
    a('s_barrier')
    a(f's_add_u32 s91, s91, {NWORK}')
    a('s_branch L_w_g')
    INK = os.environ.get('INK', 'all')
    a.label('L_w_a0')
    if INK == 'none':
        a('s_branch L_ch_done')
    a('s_sub_u32 s91, s91, 80')
    a.label('L_w_a')
    a(f's_cmp_ge_u32 s91, {16*(32+5*KSP)}')
    a('s_cbranch_scc1 L_ch_done')
    divmod_const(a, 91, 82, 83, 32+5*KSP)
    a('s_cmp_ge_u32 s83, 32')
    a('s_cbranch_scc1 L_w_o')
    a("""
    s_lshr_b32 s41, s83, 3
    s_lshl_b32 s90, s82, 2
    s_add_u32 s41, s41, s90            ; seg
    s_and_b32 s42, s83, 7
    s_lshl_b32 s42, s42, 2
    s_add_u32 s42, s42, s44            ; head
    s_lshr_b32 s90, s82, 1
    """)
    wwait(90, 8, 24, 'aq')
    a(f"""
    s_cmp_lg_u32 s80, 0
    s_cbranch_scc1 L_w_okas
    v_mov_b32 v24, 120
    s_mov_b32 s74, 0
    """)
    a.label('L_w_wtas')
    a(f"""
    buffer_load_dword v25, v24, s[92:95], 0 offen sc1
    s_waitcnt vmcnt(0)
    v_readfirstlane_b32 s66, v25
    s_add_u32 s74, s74, 1
    s_cmp_ge_u32 s74, {SPIN_MAX*4}
    s_cbranch_scc1 L_ch_done
    s_cmp_gt_u32 s66, s41
    s_cbranch_scc1 L_w_okas
    s_sleep {WSL}
    s_branch L_w_wtas
    """)
    a.label('L_w_okas')
    a('s_barrier')
    attn_body(a, ' sc1')
    a('s_mov_b32 s44, s80')
    wsig(82, 32, 'a')
    a(f's_add_u32 s91, s91, {NWORK}')
    a('s_branch L_w_a')
    a.label('L_w_o')
    if INK == 'attn':
        a(f's_add_u32 s91, s91, {NWORK}')
        a('s_branch L_w_a')
    a('s_sub_u32 s83, s83, 32')
    divmod_const(a, 83, 42, 40, 5)
    a('s_mov_b32 s41, s82')
    wwait(82, 32, 32, 'o')
    a('s_mov_b32 s6, s78'); a('s_mov_b32 s7, s79')
    gemm_body(a, cO, 'L_wo')
    a('s_barrier')
    a(f's_add_u32 s91, s91, {NWORK}')
    a('s_branch L_w_a')
    LDS_BYTES = max(LDS_BYTES, lds_w, 8*16384)
    a.label('L_ch_monitor')
    a(f"""
    s_cmp_lg_u32 s40, 0
    s_cbranch_scc1 L_ch_done
    v_lshlrev_b32 v6, 4, v2
    v_add_u32 v7, 4096, v6
    v_add_u32 v8, 8192, v6
    v_mov_b32 v24, 120
    s_mov_b32 s62, 1
    """)
    a.label('L_ch_mstep')
    a("""
    s_and_b32 s66, s62, 3
    s_lshl_b32 s67, s66, 14
    s_mov_b32 s74, 0
    """)
    a.label('L_ch_mpoll')
    for i in range(10):
        a(f'buffer_load_dwordx4 v[{32+4*i}:{35+4*i}], v{6 + i//4}, s[16:19], s67 offen offset:{(i%4)*1024} sc1')
    a('s_waitcnt vmcnt(0)')
    anysent(list(range(32, 72)), TMP + 1)
    a(f"""
    s_add_u32 s74, s74, 1
    s_cmp_ge_u32 s74, {SPIN_MAX}
    s_cbranch_scc1 L_ch_done
    s_cbranch_vccz L_ch_mok
    s_sleep 16
    s_branch L_ch_mpoll
    """)
    a.label('L_ch_mok')
    a(f"""
    v_mov_b32 v25, s62
    s_mov_b64 exec, 1
    buffer_store_dword v25, v24, s[92:95], 0 offen sc1
    s_mov_b64 exec, -1
    s_add_u32 s62, s62, 1
    s_cmp_lt_u32 s62, {NSEG}
    s_cbranch_scc1 L_ch_mstep
    v_lshlrev_b32 v6, 3, v2
    v_add_u32 v6, 256, v6
    s_mov_b32 s74, 0
    """)
    a.label('L_ch_mlast')
    a(f"""
    buffer_load_dwordx2 v[32:33], v6, s[92:95], 0 offen sc1
    s_waitcnt vmcnt(0)
    v_min_u32 v32, v32, v33
    v_cmp_gt_u32 vcc, {NSEG}, v32
    s_add_u32 s74, s74, 1
    s_cmp_ge_u32 s74, {SPIN_MAX}
    s_cbranch_scc1 L_ch_done
    s_cbranch_vccnz L_ch_mlast
    v_mov_b32 v25, {NSEG}
    s_mov_b64 exec, 1
    buffer_store_dword v25, v24, s[92:95], 0 offen sc1
    s_mov_b64 exec, -1
    s_branch L_ch_done
    """)
    a.label('L_ch_reducer')
    a(f"""
    s_sub_u32 s43, s2, 128
    s_lshl_b32 s43, s43, 2
    s_add_u32 s43, s43, s40
    s_lshl_b32 s48, s43, 13
    v_lshlrev_b32 v23, 4, v2
    v_add_u32 v23, s48, v23
    v_add_u32 v27, 4096, v23
    ; dst = r*128 + (l&7)*16 + ((l>>3)&1)*8
    v_lshrrev_b32 v24, 3, v2
    v_and_b32 v24, 1, v24
    v_lshlrev_b32 v24, 3, v24
    v_lshl_add_u32 v24, v5, 4, v24
    s_lshl_b32 s48, s43, 7
    v_add_u32 v24, s48, v24
    v_mov_b32 v28, -1
    v_mov_b32 v29, -1
    s_mov_b32 s62, 0
    """)
    if STAMP:
        srd(a, 76, 4, 1 << 20, WS_USED)
        a('s_lshl_b32 s48, s43, 7')
        a('v_mov_b32 v1, s48')
    a.label('L_ch_rstep')
    a(f"""
    s_and_b32 s66, s62, 3
    s_mul_i32 s69, s66, {PR_STRIDE}
    s_add_u32 s66, s62, 1
    s_and_b32 s66, s66, 3
    s_lshl_b32 s72, s66, 14
    s_add_u32 s66, s62, 3
    s_and_b32 s66, s66, 3
    s_lshl_b32 s73, s66, 14
    s_mov_b32 s74, 0
    """)
    sleep(SL[2])
    def ldC(b):
        for i in range(8):
            a(f'buffer_load_dwordx4 v[{b+4*i}:{b+4*i+3}], v{23 if i<4 else 27}, s[24:27], s69 offen offset:{(i%4)*1024} sc1')
    ppoll('C_', ldC, R, PC, 32, 8, TMP+1)
    stamp(4)
    F = 160
    for k in range(4):
        for j in range(4):
            a(f'v_add_f32 v{F+4*k+j}, v{R+4*k+j}, v{R+4*(k+4)+j}')
    for i in (2, 1):
        for k in range(i):
            for j in range(4):
                a(f'v_add_f32 v{F+4*k+j}, v{F+4*k+j}, v{F+4*(k+i)+j}')
    R = F
    for j in range(4):
        xgroup_reduce(a, R + j, TMP + 1, 'v_add_f32')
    a(f"""
    v_cvt_pk_bf16_f32 v{R+4}, v{R}, v{R+1}
    v_cvt_pk_bf16_f32 v{R+5}, v{R+2}, v{R+3}
    v_min_u32 v{R+4}, 0xfffffffe, v{R+4}
    v_min_u32 v{R+5}, 0xfffffffe, v{R+5}
    s_mov_b64 exec, 0xffff
    buffer_store_dwordx2 v[{R+4}:{R+5}], v24, s[16:19], s72 offen sc1
    buffer_store_dwordx2 v[28:29], v24, s[16:19], s73 offen sc1
    s_mov_b64 exec, -1
    s_add_u32 s62, s62, 1
    s_cmp_lt_u32 s62, {NSEG-1}
    s_cbranch_scc1 L_ch_rstep
    """)
    a.label('L_ch_done')
    if os.environ.get('ENDSTAMP'):
        a('s_cmp_ge_u32 s2, 256')
        a('s_cbranch_scc1 L_ch_done2')
        srd(a, 76, 4, 1 << 20, WS_USED)
        a('s_memrealtime s[80:81]')
        a('s_waitcnt lgkmcnt(0)')
        a('v_mov_b32 v30, s80')
        a('v_mov_b32 v31, s81')
        a('s_lshl_b32 s43, s2, 3')
        a('v_mov_b32 v1, s43')
        a('s_mov_b64 exec, 1')
        a('buffer_store_dwordx2 v[30:31], v1, s[76:79], 0 offen')
        a.label('L_ch_done2')
    a('s_endpgm')
    return name, kernel_desc(name, 512, accum=256), (NWG, 256, LDS_BYTES)
```

```python
from common import *


def divmod_const(a, src, q, r, d):
    magic = (1 << 32) // d + 1
    a(f's_mov_b32 s60, {magic:#x}')
    a(f's_mul_hi_u32 s{q}, s{src}, s60')
    a(f's_mul_i32 s61, s{q}, {d}')
    a(f's_sub_u32 s{r}, s{src}, s61')

def gen_gemm(a, cfg):
    name = cfg['name']
    tm, tn, ks = cfg['tiles']
    ntiles = tm * tn * ks
    L = f'L_{name}'
    kernel_header(a, name)
    a(f"""
    s_cmp_ge_u32 s2, {ntiles}
    s_cbranch_scc1 {L}_done
    s_load_dwordx2 s[4:5], s[0:1], {KA_WS}
    s_load_dwordx2 s[6:7], s[0:1], {cfg['w_srcs'][0]}
    s_load_dwordx2 s[8:9], s[0:1], {cfg['w_srcs'][-1]}
    """)
    divmod_const(a, 2, 43, 40, tn)
    divmod_const(a, 43, 42, 41, tm)
    a("""
    v_lshrrev_b32 v1, 6, v0
    v_and_b32 v2, 63, v0
    s_nop 0
    v_readfirstlane_b32 s44, v1
    s_waitcnt lgkmcnt(0)
    """)
    vEND, lds = gemm_body(a, cfg, L)
    a.label(f'{L}_done')
    a('s_endpgm')
    NW = cfg['WR'] * cfg['WC']
    return name, kernel_desc(name, vEND), (ntiles, NW * 64, lds)

def gemm_body(a, cfg, L):
    name = cfg['name']; BM = cfg['BM']; BN = cfg['BN']; WR = cfg['WR']; WC = cfg['WC']
    NW = WR * WC
    WM, WN = BM // WR, BN // WC
    MT, NT = WM // 16, WN // 16
    nb = cfg.get('nb', 1)
    BNs = BN // nb
    rowb = BNs * 2
    lda, ldw = cfg['lda'], cfg['ldw']
    nk = cfg['nk']
    tm, tn, ks = cfg['tiles']
    ntiles = tm * tn * ks
    A_BYTES = BM * 64
    B_BYTES = 32 * BN * 2
    STAGE = A_BYTES + B_BYTES
    nA = A_BYTES // 1024 // NW
    nB = B_BYTES // 1024 // NW
    assert A_BYTES % (1024 * NW) == 0 and B_BYTES % (1024 * NW) == 0
    NDMA = nA + nB
    NST = cfg.get('nst', 3)
    a(f's_lshr_b32 s45, s44, {WC.bit_length()-1}')
    a(f's_and_b32 s46, s44, {WC-1}')
    kind, aoff, abytes = cfg['a_src']
    srd(a, 12, 4, abytes, aoff)
    if cfg['epi'] == 'qk':
        half = tn // 2
        a(f's_cmp_ge_u32 s40, {half}')
        a('s_cselect_b32 s16, s8, s6')
        a('s_cselect_b32 s17, s9, s7')
        a(f's_mov_b32 s18, {cfg["w_bytes"]:#x}')
        a('s_mov_b32 s19, 0x20000')
        a(f's_cselect_b32 s47, {half}, 0')
        a('s_sub_u32 s47, s40, s47')
    else:
        srd(a, 16, 6, cfg['w_bytes'])
        a('s_mov_b32 s47, s40')
    if nb == 2:
        srd(a, 20, 8, cfg['w_bytes'])
    a(f"""
    v_lshrrev_b32 v3, 2, v2
    v_and_b32 v4, 3, v2                ; pos
    v_lshrrev_b32 v5, 3, v3
    v_lshlrev_b32 v5, 1, v5
    v_xor_b32 v4, v4, v5               ; chunk
    s_mul_i32 s48, s41, {BM}           ; m0
    s_mul_i32 s49, s44, {nA*16}
    s_add_u32 s48, s48, s49
    v_add_u32 v3, s48, v3
    s_mov_b32 s60, {lda*2}
    v_mul_lo_u32 v3, v3, s60
    v_lshl_add_u32 v6, v4, 4, v3
    """)
    for i in range(1, nA):
        a(f'v_add_u32 v{6+i}, {i*16*lda*2:#x}, v6')
    vA0 = 6
    vB0 = 6 + nA
    lpr = rowb // 16
    rpi = 1024 // rowb
    ipb = (32 * rowb) // 1024
    assert nB <= ipb and ipb % nB == 0
    a(f"""
    s_mul_i32 s50, s44, {nB}
    """)
    a(f's_lshr_b32 s51, s50, {ipb.bit_length()-1}')
    a(f's_and_b32 s52, s50, {ipb-1}')
    for i in range(nB):
        a(f"""
        v_lshrrev_b32 v3, {lpr.bit_length()-1}, v2       ; l // lpr
        s_add_u32 s53, s52, {i}
        s_mul_i32 s53, s53, {rpi}
        v_add_u32 v3, s53, v3                            ; k row (0..31)
        v_and_b32 v4, {lpr-1}, v2                        ; pos16
        v_and_b32 v5, 3, v3
        v_lshrrev_b32 v30, 3, v3
        v_and_b32 v30, 1, v30
        v_lshl_or_b32 v5, v30, 2, v5                     ; y
        v_lshlrev_b32 v5, 1, v5
        v_xor_b32 v4, v4, v5
        s_mov_b32 s60, {ldw*2}
        v_mul_lo_u32 v3, v3, s60
        v_lshl_add_u32 v3, v4, 4, v3
        s_mul_i32 s53, s47, {BNs*2}                      ; n0 bytes
        v_add_u32 v{vB0+i}, s53, v3
        """)
    vFA = vB0 + nB
    vFB = vFA + 1
    vTA = vFB + 8
    vTB = vTA + 1
    vFR = vTB + 8
    vFR = (vFR + 3) // 4 * 4
    vAfr = vFR
    vBfr = vAfr + MT * 4
    AG = cfg.get('agpr', False)
    vACC = 0 if AG else vBfr + NT * 4
    vEND = (vBfr + NT * 4 + 16) if AG else vACC + MT * NT * 4
    SC = ' sc1' if cfg.get('sc1') else ''
    P = 'a' if AG else 'v'
    def accv(base, tmp):
        if not AG:
            return base
        for r in range(4):
            a(f'v_accvgpr_read_b32 v{tmp+r}, a{base+r}')
        return tmp
    a(f"""
    v_and_b32 v3, 15, v2
    v_lshrrev_b32 v4, 4, v2            ; g
    v_lshrrev_b32 v5, 3, v3
    v_lshlrev_b32 v5, 1, v5
    v_xor_b32 v5, v4, v5
    s_mul_i32 s53, s45, {WM}
    v_add_u32 v30, s53, v3
    v_lshlrev_b32 v30, 6, v30
    v_lshl_add_u32 v{vFA}, v5, 4, v30
    """)
    a(f"""
    v_lshrrev_b32 v5, 2, v3            ; r
    v_and_b32 v30, 3, v2               ; c
    v_lshl_add_u32 v31, v4, 3, v5      ; k = 8g + r
    v_mul_u32_u24 v31, {rowb}, v31
    v_lshl_add_u32 v31, v30, 3, v31
    v_add_u32 v31, {A_BYTES}, v31
    v_and_b32 v30, 1, v4
    v_lshl_or_b32 v5, v30, 2, v5       ; y
    """)
    for u in range(8):
        a(f'v_xor_b32 v30, {u}, v5')
        a(f'v_lshl_add_u32 v{vFB+u}, v30, 5, v31')
    NTs = NT // nb
    if NTs >= 8:
        assert NTs % 8 == 0
        a(f's_mul_i32 s53, s46, {NTs*32}')
        for u in range(8):
            a(f'v_add_u32 v{vFB+u}, s53, v{vFB+u}')
        unit_of = lambda t: (t // NTs, t % NTs)
        lowbits = lambda lu: lu & 7
        highoff = lambda lu: (lu >> 3) * 256
    else:
        a(f's_mul_i32 s53, s46, {NTs}')
        for u in range(NTs):
            a(f'v_add_u32 v30, s53, {u}' if False else f's_add_u32 s54, s53, {u}')
            a(f'v_xor_b32 v30, s54, v5')
            a(f'v_lshl_add_u32 v{vFB+u}, v30, 5, v31')
        unit_of = lambda t: (t // NTs, t % NTs)
        lowbits = lambda lu: lu
        highoff = lambda lu: 0
    nFB = 8 if NTs >= 8 else NTs
    for r in range(vACC, vACC + MT * NT * 4):
        a(f'v_accvgpr_write_b32 a{r}, 0' if AG else f'v_mov_b32 v{r}, 0')
    kbase = cfg.get('ksplit_len', 0)
    a(f's_mul_i32 s56, s42, {kbase*2}')
    a(f's_mul_i32 s57, s42, {kbase*ldw*2}')
    a('s_mov_b32 s58, 0')
    a('s_mov_b32 s59, 0')
    a(f's_mul_i32 s63, s44, {nA*1024}')
    a(f's_mul_i32 s64, s44, {nB*1024}')
    a(f's_add_u32 s64, s64, {A_BYTES}')
    if nb == 2:
        a('s_cmp_eq_u32 s51, 0')
        a('s_cselect_b32 s24, s16, s20')
        a('s_cselect_b32 s25, s17, s21')
        a(f's_mov_b32 s26, {cfg["w_bytes"]:#x}')
        a('s_mov_b32 s27, 0x20000')
        BS = 24
    else:
        BS = 16
    def dma():
        for i in range(nA):
            a(f's_add_u32 s65, s58, s63')
            a(f's_add_u32 m0, s65, {i*1024}')
            a('s_nop 0')
            a(f'buffer_load_dwordx4 v{vA0+i}, s[12:15], s56 offen' + (' sc1' if cfg.get('a_sc1') else '') + ' lds')
        for i in range(nB):
            a(f's_add_u32 s65, s58, s64')
            a(f's_add_u32 m0, s65, {i*1024}')
            a('s_nop 0')
            a(f'buffer_load_dwordx4 v{vB0+i}, s[{BS}:{BS+3}], s57 offen lds')
        a('s_add_u32 s56, s56, 64')
        a(f's_add_u32 s57, s57, {32*ldw*2}')
        a(f's_add_u32 s58, s58, {STAGE}')
        a(f's_cmp_ge_u32 s58, {NST*STAGE}')
        a('s_cselect_b32 s58, 0, s58')
    def compute():
        a(f'v_add_u32 v{vTA}, s59, v{vFA}')
        for u in range(nFB):
            a(f'v_add_u32 v{vTB+u}, s59, v{vFB+u}')
        rd = []
        def rB(t):
            sub, lu = unit_of(t)
            base = sub * 32 * rowb + highoff(lu)
            rd.append(('B', t, f'ds_read_b64_tr_b16 v[{vBfr+4*t}:{vBfr+4*t+1}], v{vTB+lowbits(lu)} offset:{base}'))
            rd.append(('B', t, f'ds_read_b64_tr_b16 v[{vBfr+4*t+2}:{vBfr+4*t+3}], v{vTB+lowbits(lu)} offset:{base+4*rowb}'))
        def rA(t):
            rd.append(('A', t, f'ds_read_b128 v[{vAfr+4*t}:{vAfr+4*t+3}], v{vTA} offset:{t*1024}'))
        rA(0)
        for t in range(NT):
            rB(t)
        for t in range(1, MT):
            rA(t)
        last = {}
        for i, r in enumerate(rd):
            last[(r[0], r[1])] = i
        AHEAD = 10
        issued = 0
        done = -1
        mf = [(mt, nt) for mt in range(MT) for nt in range(NT)]
        for (mt, nt) in mf:
            need = max(last[('A', mt)], last[('B', nt)])
            while issued < len(rd) and (issued <= need or issued - done - 1 < AHEAD):
                a(rd[issued][2]); issued += 1
                if issued > need and issued - done - 1 >= AHEAD:
                    break
            if need > done:
                a(f's_waitcnt lgkmcnt({issued - need - 1})')
                done = need
            acc = vACC + (mt * NT + nt) * 4
            A_, B_ = f'v[{vAfr+4*mt}:{vAfr+4*mt+3}]', f'v[{vBfr+4*nt}:{vBfr+4*nt+3}]'
            if cfg['form'] == 'T':
                a(f'v_mfma_f32_16x16x32_bf16 {P}[{acc}:{acc+3}], {B_}, {A_}, {P}[{acc}:{acc+3}]')
            else:
                a(f'v_mfma_f32_16x16x32_bf16 {P}[{acc}:{acc+3}], {A_}, {B_}, {P}[{acc}:{acc+3}]')
        a(f's_add_u32 s59, s59, {STAGE}')
        a(f's_cmp_ge_u32 s59, {NST*STAGE}')
        a('s_cselect_b32 s59, 0, s59')
    for _ in range(NST - 1):
        dma()
    a(f's_mov_b32 s62, {nk-(NST-1)}')
    a.label(f'{L}_loop')
    a(f's_waitcnt vmcnt({NDMA*(NST-2)})')
    a('s_barrier')
    dma()
    compute()
    a('s_sub_u32 s62, s62, 1')
    a('s_cmp_lg_u32 s62, 0')
    a(f's_cbranch_scc1 {L}_loop')
    for j in range(NST - 1):
        a(f's_waitcnt vmcnt({NDMA*(NST-2-j)})')
        a('s_barrier')
        compute()
    a('s_nop 7')
    a('s_nop 7')
    epi = cfg['epi']
    T0 = vFR
    if epi in ('qk', 'ffn2', 'ffn1', 'part'):
        ldo = cfg['ldo']
        esz = 4 if epi == 'part' else 2
        if epi == 'qk':
            a(f's_cmp_ge_u32 s40, {tn//2}')
            a(f's_mov_b32 s54, {QX_OFF:#x}')
            a(f's_cselect_b32 s53, {KX_OFF:#x}, s54')
            a('s_add_u32 s28, s4, s53')
            a('s_addc_u32 s29, s5, 0')
            a(f's_mov_b32 s30, {S*HD*2:#x}')
            a('s_mov_b32 s31, 0x20000')
        elif epi == 'part':
            a(f's_mul_i32 s53, s42, {S*DM*4}')
            a(f's_add_u32 s53, s53, {PART_OFF:#x}')
            a('s_add_u32 s28, s4, s53')
            a('s_addc_u32 s29, s5, 0')
            a(f's_mov_b32 s30, {S*DM*4:#x}')
            a('s_mov_b32 s31, 0x20000')
        else:
            srd(a, 28, 4, cfg['out_bytes'], cfg['out_off'])
        WNo = WN // nb
        a(f"""
        v_and_b32 v3, 15, v2
        v_lshrrev_b32 v4, 4, v2
        s_mul_i32 s53, s41, {BM}
        s_mul_i32 s54, s45, {WM}
        s_add_u32 s53, s53, s54
        v_add_u32 v3, s53, v3
        s_mov_b32 s60, {ldo*esz}
        v_mul_lo_u32 v3, v3, s60
        s_mul_i32 s53, s47, {BNs}
        s_mul_i32 s54, s46, {WNo}
        s_add_u32 s53, s53, s54
        v_lshl_add_u32 v4, v4, 2, s53
        v_lshl_add_u32 v3, v4, {1 if esz==2 else 2}, v3
        """)
        for mt in range(MT):
            if mt:
                a(f'v_add_u32 v3, {16*ldo*esz:#x}, v3')
            for nt in range(NT // nb):
                t = T0 + 4 * (nt % 4)
                acc = accv(vACC + (mt * NT + nt) * 4, T0 + 16 + 8 * (nt % 2))
                if epi == 'part':
                    a(f'buffer_store_dwordx4 v[{acc}:{acc+3}], v3, s[28:31], 0 offen offset:{nt*64}')
                    continue
                if epi == 'ffn1':
                    accu = accv(vACC + (mt * NT + nt + NT // 2) * 4, T0 + 20 + 8 * (nt % 2))
                    for r in range(4):
                        bf16r(a, acc + r, acc + r)
                        bf16r(a, accu + r, accu + r)
                        a(f'v_cmp_lt_f32 vcc, 0, v{acc+r}')
                        a('s_nop 1')
                        a(f'v_cndmask_b32 v{t+2}, 0, 1.0, vcc')
                        a(f'v_mul_f32 v{acc+r}, v{acc+r}, v{t+2}')
                        a(f'v_mul_f32 v{acc+r}, v{acc+r}, v{accu+r}')
                a(f'v_cvt_pk_bf16_f32 v{t}, v{acc}, v{acc+1}')
                a(f'v_cvt_pk_bf16_f32 v{t+1}, v{acc+2}, v{acc+3}')
                a(f'buffer_store_dwordx2 v[{t}:{t+1}], v3, s[28:31], 0 offen offset:{nt*32}{SC}')
    elif epi == 'v':
        srd(a, 28, 4, S * HD * 2, VF_OFF)
        a(f"""
        s_mul_i32 s53, s41, {BM//32}
        s_mul_i32 s54, s45, {WM//32}
        s_add_u32 s53, s53, s54            ; seg0
        s_mul_i32 s53, s53, {384*1024}
        s_mul_i32 s54, s47, {BN//16}
        s_mul_i32 s55, s46, {NT}
        s_add_u32 s54, s54, s55
        s_lshl_b32 s54, s54, 10
        s_add_u32 s53, s53, s54
        v_lshlrev_b32 v3, 4, v2
        v_add_u32 v3, s53, v3
        """)
        for mp in range(MT // 2):
            if mp:
                a(f'v_add_u32 v3, {384*1024:#x}, v3')
            a('v_add_u32 v4, 4096, v3')
            for nt in range(NT):
                t = T0 + 4 * (nt % 4)
                a0 = accv(vACC + ((2 * mp) * NT + nt) * 4, T0 + 16 + 8 * (nt % 2))
                a1 = accv(vACC + ((2 * mp + 1) * NT + nt) * 4, T0 + 20 + 8 * (nt % 2))
                a(f'v_cvt_pk_bf16_f32 v{t}, v{a0}, v{a0+1}')
                a(f'v_cvt_pk_bf16_f32 v{t+1}, v{a0+2}, v{a0+3}')
                a(f'v_cvt_pk_bf16_f32 v{t+2}, v{a1}, v{a1+1}')
                a(f'v_cvt_pk_bf16_f32 v{t+3}, v{a1+2}, v{a1+3}')
                voff = 'v3' if nt < 4 else 'v4'
                a(f'buffer_store_dwordx4 v[{t}:{t+3}], {voff}, s[28:31], 0 offen offset:{(nt%4)*1024}{SC}')
    return vEND, NST * STAGE

GEMMS = [
    dict(name='gqk_kernel', BM=256, BN=256, WR=2, WC=4, a_src=('ws', XN_OFF, S*DM*2), lda=DM, nk=DM//32,
         w_srcs=[KA_WQ, KA_WK], ldw=HD, w_bytes=DM*HD*2, tiles=(S//256, 2*HD//256, 1), form='T', epi='qk', ldo=HD),
    dict(name='gv_kernel', BM=256, BN=256, WR=2, WC=4, a_src=('ws', XN_OFF, S*DM*2), lda=DM, nk=DM//32,
         w_srcs=[KA_WV], ldw=HD, w_bytes=DM*HD*2, tiles=(S//256, HD//256, 1), form='N', epi='v'),
    dict(name='gf1_kernel', BM=128, BN=256, WR=2, WC=4, a_src=('ws', XN_OFF, S*DM*2), lda=DM, nk=DM//32, nb=2,
         w_srcs=[KA_WG, KA_WU], ldw=FF, w_bytes=DM*FF*2, tiles=(S//128, FF//128, 1), form='T', epi='ffn1', ldo=FF,
         out_off=H_OFF, out_bytes=S*FF*2),
    dict(name='gf2_kernel', BM=128, BN=128, WR=2, WC=4, a_src=('ws', H_OFF, S*FF*2), lda=FF, nk=FF//32,
         w_srcs=[KA_WD], ldw=DM, w_bytes=FF*DM*2, tiles=(S//128, DM//128, 1), form='T', epi='ffn2', ldo=DM,
         out_off=BO_OFF, out_bytes=S*DM*2),
    dict(name='gout_kernel', BM=128, BN=128, WR=2, WC=4, a_src=('ws', O_OFF, S*HD*2), lda=HD, nk=HD//KSP//32, ksplit_len=HD//KSP,
         w_srcs=[KA_WO], ldw=DM, w_bytes=HD*DM*2, tiles=(S//128, DM//128, KSP), form='T', epi='part', ldo=DM, nst=int(__import__('os').environ.get('NST','6'))),
]
```

```python
from common import *

def gen_ln(a):
    name = 'ln_kernel'
    kernel_header(a, name)
    a(f"""
    s_cmp_ge_u32 s2, 512
    s_cbranch_scc1 L_ln_done
    s_load_dwordx2 s[4:5], s[0:1], {KA_X}
    s_load_dwordx2 s[6:7], s[0:1], {KA_MEM0}
    s_load_dwordx2 s[8:9], s[0:1], {KA_WS}
    s_waitcnt lgkmcnt(0)
    """)
    srd(a, 12, 4, S * DM * 2)
    srd(a, 16, 8, S * DM * 2, XN_OFF)
    srd(a, 20, 6, MM * DM * 2)
    fill_base = MEMR_OFF + MEMR_STRIDE
    fill_bytes = RING_END - fill_base
    srd(a, 24, 8, fill_bytes, fill_base)
    srd(a, 28, 8, 10240, MEMR_OFF)
    srd(a, 36, 8, 4096, CNT_OFF)
    a(f"""
    v_lshrrev_b32 v1, 6, v0            ; wave
    v_and_b32 v2, 63, v0               ; lane
    s_lshl_b32 s3, s2, 2
    v_add_u32 v3, s3, v1               ; row
    v_mul_u32_u24 v3, 1280, v3
    v_lshl_add_u32 v3, v2, 2, v3
    buffer_load_dword v10, v3, s[12:15], 0 offen
    buffer_load_dword v11, v3, s[12:15], 0 offen offset:256
    buffer_load_dword v12, v3, s[12:15], 0 offen offset:512
    buffer_load_dword v13, v3, s[12:15], 0 offen offset:768
    buffer_load_dword v14, v3, s[12:15], 0 offen offset:1024
    s_lshl_b32 s3, s2, 8
    v_add_u32 v4, s3, v0               ; gid
    v_lshlrev_b32 v5, 4, v4            ; gid*16
    v_mov_b32 v40, -1
    v_mov_b32 v41, -1
    v_mov_b32 v42, -1
    v_mov_b32 v43, -1
    v_add_u32 v6, {131072*16:#x}, v5
    buffer_store_dwordx4 v[40:43], v5, s[24:27], 0 offen
    buffer_store_dwordx4 v[40:43], v6, s[24:27], 0 offen
    v_lshlrev_b32 v7, 2, v4
    v_mov_b32 v8, 0
    buffer_store_dword v8, v7, s[36:39], 0 offen
    v_and_b32 v6, 7, v4                ; row
    v_lshrrev_b32 v7, 3, v4            ; line r
    v_mul_u32_u24 v8, 1280, v6
    v_lshl_add_u32 v8, v7, 4, v8
    v_cmp_gt_u32 vcc, 640, v4
    s_and_saveexec_b64 s[32:33], vcc
    s_cbranch_execz L_ln_nomem
    buffer_load_dwordx4 v[44:47], v8, s[20:23], 0 offen
    v_lshlrev_b32 v9, 7, v7
    v_lshl_add_u32 v9, v6, 4, v9
    s_waitcnt vmcnt(0)
    v_min_u32 v44, 0xfffffffe, v44
    v_min_u32 v45, 0xfffffffe, v45
    v_min_u32 v46, 0xfffffffe, v46
    v_min_u32 v47, 0xfffffffe, v47
    buffer_store_dwordx4 v[44:47], v9, s[28:31], 0 offen
    """)
    a.label('L_ln_nomem')
    a("""
    s_mov_b64 exec, s[32:33]
    s_waitcnt vmcnt(0)
    """)
    for i in range(5):
        a(f'v_lshlrev_b32 v{20+2*i}, 16, v{10+i}')
        a(f'v_and_b32 v{21+2*i}, 0xffff0000, v{10+i}')
    def wave_sum(reg):
        for x in (0x041F, 0x081F, 0x101F, 0x201F, 0x401F):
            a(f'ds_swizzle_b32 v31, v{reg} offset:{x:#x}')
            a('s_waitcnt lgkmcnt(0)')
            a(f'v_add_f32 v{reg}, v{reg}, v31')
        a('s_nop 0')
        a(f'v_readlane_b32 s34, v{reg}, 0')
        a(f'v_readlane_b32 s35, v{reg}, 32')
        a('s_nop 1')
        a(f'v_mov_b32 v{reg}, s34')
        a(f'v_add_f32 v{reg}, s35, v{reg}')
    a('v_add_f32 v30, v20, v21')
    for i in range(2, 10):
        a(f'v_add_f32 v30, v30, v{20+i}')
    wave_sum(30)
    a(f'v_mul_f32 v30, {1.0/640!r}, v30')
    a('v_sub_f32 v32, v20, v30')
    a('v_mul_f32 v33, v32, v32')
    for i in range(1, 10):
        a(f'v_sub_f32 v32, v{20+i}, v30')
        a('v_fmac_f32 v33, v32, v32')
    wave_sum(33)
    a(f'v_mul_f32 v33, {1.0/640!r}, v33')
    bf16r(a, 30, 30)
    bf16r(a, 33, 33)
    a('v_add_f32 v33, 0x3727c5ac, v33')
    bf16r(a, 33, 33)
    a('v_sqrt_f32 v33, v33')
    a('s_nop 0')
    bf16r(a, 33, 33)
    a('v_rcp_f32 v34, v33')
    a('s_nop 0')
    for i in range(10):
        r = 20 + i
        a(f'v_sub_f32 v{r}, v{r}, v30')
        bf16r(a, r, r)
        a(f'v_mul_f32 v35, v{r}, v34')
        a(f'v_fma_f32 v36, -v35, v33, v{r}')
        a(f'v_fma_f32 v{r}, v36, v34, v35')
    for i in range(5):
        a(f'v_cvt_pk_bf16_f32 v{10+i}, v{20+2*i}, v{21+2*i}')
    a("""
    buffer_store_dword v10, v3, s[16:19], 0 offen
    buffer_store_dword v11, v3, s[16:19], 0 offen offset:256
    buffer_store_dword v12, v3, s[16:19], 0 offen offset:512
    buffer_store_dword v13, v3, s[16:19], 0 offen offset:768
    buffer_store_dword v14, v3, s[16:19], 0 offen offset:1024
    """)
    a.label('L_ln_done')
    a('s_endpgm')
    return name, kernel_desc(name, 64), (512, 256, 0)
```

```python
import sys
from common import *
from k_ln import gen_ln
from k_gemm import gen_gemm, GEMMS
from k_attn import gen_attn, gen_final
from k_chain import gen_chain

order_names = ('gout_kernel',)
def build(SL=(0,0,0,0), STAMP=False):
    a = Asm()
    ks = {}
    order = []
    def add(r):
        ks[r[0]] = r
    add(gen_ln(a))
    for g in GEMMS:
        if g['name'] in order_names:
            add(gen_gemm(a, g))
    add(gen_chain(a, SL, STAMP))
    add(gen_final(a))
    add(gen_attn(a))
    import os
    INK = os.environ.get('INK', 'all')
    order = {'all': ['ln_kernel', 'chain_kernel', 'fin_kernel'],
             'attn': ['ln_kernel', 'chain_kernel', 'gout_kernel', 'fin_kernel'],
             'none': ['ln_kernel', 'chain_kernel', 'attn_kernel', 'gout_kernel', 'fin_kernel']}[INK]
    hdr = open('parallel_sum__memory_aug_recurrent_mem_tr__glu_gated_reglu__prompt.s.ref').read().split('\n')
    head = [l for l in hdr if l.startswith(';') and '@launch' not in l and 'Override' not in l and 'grid=ceil' not in l]
    out = '\n'.join(head) + '\n'
    for n in order:
        g, b, lds = ks[n][2]
        out += f'; @launch kernel={n} grid=({g},1,1) block=({b},1,1) lds={lds}\n'
    out += '.amdgcn_target "amdgcn-amd-amdhsa--gfx950"\n.text\n'
    out += a.text()
    out += '.section .rodata,"a"\n'
    for n in order:
        out += '.p2align 6\n' + ks[n][1]
    return out

if __name__ == '__main__':
    import os
    SL = tuple(int(x) for x in os.environ.get('SL', '0,0,0,0').split(','))
    STAMP = bool(os.environ.get('STAMP'))
    s = build(SL, STAMP)
    open(os.environ.get('OUT', 'parallel_sum__memory_aug_recurrent_mem_tr__glu_gated_reglu__prompt.s'), 'w').write(s)
    print(len(s), 'bytes')
```

```python
from common import *
import os
from k_attn import softmax_block, xgroup_reduce, SCALE, attn_body
from k_gemm import gemm_body, divmod_const

SPIN_MAX = 1 << 18

def gen_chain(a, SL=(0,0,0,0), STAMP=False):
    name = 'chain_kernel'
    kernel_header(a, name)
    NWG = 256
    NWORK = NWG - 129
    MEMF = 32
    ACC1 = 52
    OACC = 32
    KXF = 88
    VXF = 136
    QF = 184
    KMF = 208
    VMF = 232
    SACC = 184
    SACC = 76
    OF = 184
    PF = 208
    PACC = 216
    TMP = 24
    WSL = int(os.environ.get('WSL', '32'))
    NP = int(os.environ.get('NP', '1'))
    PA = [184, 204, 224][:NP-1]
    PB = [44, 56, 68][:NP-1]
    PC = [64, 96, 128][:int(os.environ.get('NPC', '1'))-1]
    AW1 = 0
    AWO = 180
    LDS_PART = 0
    LDS_SHARE = 36864
    LDS_KVX = LDS_SHARE + 9216
    LDS_BYTES = LDS_KVX + 24576
    a(f"""
    s_cmp_ge_u32 s2, {NWG}
    s_cbranch_scc1 L_ch_done
    s_load_dwordx2 s[4:5], s[0:1], {KA_WS}
    s_load_dwordx2 s[6:7], s[0:1], {KA_WQ}
    s_load_dwordx2 s[8:9], s[0:1], {KA_WK}
    s_load_dwordx2 s[10:11], s[0:1], {KA_WV}
    s_load_dwordx2 s[12:13], s[0:1], {KA_WO}
    s_load_dwordx2 s[84:85], s[0:1], {KA_DBG}
    s_load_dwordx2 s[86:87], s[0:1], {KA_WG}
    s_load_dwordx2 s[88:89], s[0:1], {KA_WU}
    v_lshrrev_b32 v1, 6, v0
    v_and_b32 v2, 63, v0
    s_nop 0
    v_readfirstlane_b32 s40, v1        ; wave
    s_and_b32 s41, s2, 7
    s_lshl_b32 s41, s41, 2
    s_lshr_b32 s42, s2, 5
    s_add_u32 s41, s41, s42
    s_lshr_b32 s42, s2, 3
    s_and_b32 s42, s42, 3
    s_waitcnt lgkmcnt(0)
    """)
    a('s_and_b32 s43, s2, 7')
    a('s_lshl_b32 s43, s43, 16')
    a(f's_add_u32 s43, s43, {MEMR_OFF:#x}')
    a('s_add_u32 s16, s4, s43')
    a('s_addc_u32 s17, s5, 0')
    a(f's_mov_b32 s18, {4 * MEMR_STRIDE:#x}')
    a('s_mov_b32 s19, 0x20000')
    srd(a, 20, 4, 4 * QKVR_STRIDE, QKVR_OFF)
    srd(a, 24, 4, 4 * PR_STRIDE, PR_OFF)
    srd(a, 28, 4, NSEG * H * 6144, KVM_OFF)
    srd(a, 32, 4, S * HD * 2, KX_OFF)
    srd(a, 36, 4, S * HD * 2, VF_OFF)
    srd(a, 92, 4, 4096, CNT_OFF)
    a(f"""
    v_and_b32 v3, 15, v2               ; l&15
    v_lshrrev_b32 v4, 4, v2            ; g4
    v_and_b32 v5, 7, v2                ; l&7
    s_cmp_ge_u32 s2, 129
    s_cbranch_scc1 L_ch_worker
    s_cmp_eq_u32 s2, 128
    s_cbranch_scc1 L_ch_monitor
    """)
    a(f"""
    v_lshrrev_b32 v6, 1, v2            ; row 0..31
    v_and_b32 v7, 1, v2
    s_mul_i32 s43, s40, 160
    v_add_u32 v8, s43, v6
    s_mov_b32 s60, {HD*2}
    v_mul_lo_u32 v8, v8, s60
    v_lshl_add_u32 v8, v7, 4, v8
    s_mul_i32 s43, s40, 9216
    v_lshlrev_b32 v9, 4, v2
    v_add_u32 v9, s43, v9
    v_lshrrev_b32 v10, 2, v3           ; r
    v_and_b32 v11, 3, v2               ; c
    v_lshl_add_u32 v12, v4, 3, v10     ; 8g + r
    v_lshlrev_b32 v12, 5, v12
    v_lshl_add_u32 v12, v11, 3, v12
    v_add_u32 v12, s43, v12
    v_lshl_add_u32 v13, v4, 2, v10     ; 4g + r
    v_lshlrev_b32 v13, 5, v13
    v_lshl_add_u32 v13, v11, 3, v13
    v_add_u32 v13, s43, v13
    s_mov_b32 s46, {DM*HD*2:#x}
    s_mov_b32 s47, 0x20000
    """)
    a(f"""
    s_mul_i32 s50, s40, 3
    s_cmp_eq_u32 s40, 3
    s_cselect_b32 s50, 8, s50
    s_mul_i32 s48, s41, 192
    v_add_u32 v14, s48, v6
    v_mul_u32_u24 v14, {DM*2}, v14
    v_lshl_add_u32 v14, v7, 4, v14
    s_mov_b32 s52, s12
    s_mov_b32 s53, s13
    s_mov_b32 s54, {HD*DM*2:#x}
    s_mov_b32 s55, 0x20000
    """)
    batches = [[('w1', t, ks) for t in range(9)] for ks in range(5)]
    wo_items = [('wo', tt, ks2) for tt in range(3) for ks2 in range(6)]
    batches += [wo_items[:9], wo_items[9:]]
    def stg(b):
        return 32 + 36 * (b % 6)
    def issue(b):
        for i, (kind, x, y) in enumerate(batches[b]):
            r = stg(b) + 4 * i
            if kind == 'w1':
                a(f"""
                s_mul_i32 s48, s42, 9
                s_add_u32 s48, s48, {x}
                s_cmp_ge_u32 s48, 12
                s_cselect_b32 s44, s8, s6
                s_cselect_b32 s45, s9, s7
                s_cselect_b32 s49, 12, 0
                s_cmp_ge_u32 s48, 24
                s_cselect_b32 s44, s10, s44
                s_cselect_b32 s45, s11, s45
                s_cselect_b32 s49, 24, s49
                s_sub_u32 s48, s48, s49
                s_lshl_b32 s48, s48, 5             ; *32 bytes
                s_mul_i32 s49, s41, 384
                s_add_u32 s48, s48, s49
                s_add_u32 s48, s48, {y*32*HD*2:#x}
                buffer_load_dwordx4 v[{r}:{r+3}], v8, s[44:47], s48 offen
                """)
            else:
                a(f"""
                s_add_u32 s48, s50, {x}
                s_min_u32 s48, s48, 9
                s_lshl_b32 s48, s48, 5
                s_mul_i32 s49, s42, 320
                s_add_u32 s48, s48, s49
                s_add_u32 s48, s48, {y*32*DM*2}
                buffer_load_dwordx4 v[{r}:{r+3}], v14, s[52:55], s48 offen
                """)
    for b in range(6):
        issue(b)
    for b in range(7):
        G = stg(b)
        left = (5 - b) if b < 1 else (6 - b)
        a(f's_waitcnt vmcnt({9*max(left,0)})')
        for i in range(9):
            a(f'ds_write_b128 v9, v[{G+4*i}:{G+4*i+3}] offset:{i*1024}')
        a('s_waitcnt lgkmcnt(0)')
        for i, (kind, x, y) in enumerate(batches[b]):
            if kind == 'w1':
                a(f'ds_read_b64_tr_b16 v[{G+4*i}:{G+4*i+1}], v12 offset:{i*1024}')
                a(f'ds_read_b64_tr_b16 v[{G+4*i+2}:{G+4*i+3}], v12 offset:{i*1024+128}')
            else:
                a(f'ds_read_b64_tr_b16 v[{G+4*i}:{G+4*i+1}], v13 offset:{i*1024}')
                a(f'ds_read_b64_tr_b16 v[{G+4*i+2}:{G+4*i+3}], v13 offset:{i*1024+512}')
        a('s_waitcnt lgkmcnt(0)')
        for i, (kind, x, y) in enumerate(batches[b]):
            dst = AW1 + (x*5+y)*4 if kind == 'w1' else AWO + (x*6+y)*4
            for r in range(4):
                a(f'v_accvgpr_write_b32 a{dst+r}, v{G+4*i+r}')
        if b == 0:
            issue(6)
    a(f"""
    v_lshl_add_u32 v6, v4, 3, v5
    v_lshlrev_b32 v6, 4, v6
    v_mov_b32 v7, v6
    s_mul_i32 s43, s40, 2560
    v_add_u32 v6, s43, v6
    v_add_u32 v7, {LDS_SHARE}, v7
    v_mov_b32 v8, v9
    v_lshrrev_b32 v10, 4, v0           ; t
    v_and_b32 v11, 15, v0              ; i
    s_mul_i32 s43, s42, 9
    v_add_u32 v12, s43, v10            ; T global
    v_lshrrev_b32 v13, 3, v11
    v_lshlrev_b32 v13, 5, v13
    v_and_b32 v14, 7, v11
    v_add_u32 v13, v13, v14            ; T-form l1
    v_cmp_le_u32 vcc, 24, v12
    s_nop 1
    v_cndmask_b32 v13, v13, v11, vcc
    v_lshlrev_b32 v13, 4, v13
    v_lshl_add_u32 v9, v10, 10, v13
    s_mul_i32 s43, s41, 9216
    s_mul_i32 s48, s42, 2304
    s_add_u32 s43, s43, s48
    v_lshlrev_b32 v10, 4, v0
    v_add_u32 v10, s43, v10
    s_mul_i32 s43, s41, 6144
    s_add_u32 s43, s43, s48
    s_sub_u32 s43, s43, 3072
    v_lshlrev_b32 v11, 4, v0
    v_add_u32 v11, s43, v11
    v_cmp_gt_u32 vcc, 144, v0
    s_mov_b64 s[52:53], vcc
    v_cmp_le_u32 vcc, 12, v12
    s_and_b64 s[54:55], vcc, s[52:53]
    s_mul_i32 s43, s41, 9216
    s_mul_i32 s48, s40, 2304
    s_add_u32 s43, s43, s48
    v_lshlrev_b32 v12, 4, v2
    v_min_u32 v13, 15, v2
    v_lshlrev_b32 v13, 4, v13
    v_add_u32 v13, 2048, v13
    v_add_u32 v15, s48, v12
    v_add_u32 v15, {LDS_SHARE}, v15
    v_add_u32 v16, s48, v13
    v_add_u32 v16, {LDS_SHARE}, v16
    v_add_u32 v12, s43, v12
    v_add_u32 v13, s43, v13
    v_and_b32 v14, 1, v4
    v_lshlrev_b32 v14, 3, v14
    v_lshl_add_u32 v14, v3, 4, v14
    v_add_u32 v14, {LDS_SHARE+6144}, v14
    s_mul_i32 s43, s42, 20
    s_lshl_b32 s48, s50, 1
    s_add_u32 s43, s43, s48
    v_lshrrev_b32 v17, 1, v4
    v_add_u32 v17, s43, v17
    v_lshlrev_b32 v17, 13, v17
    v_and_b32 v18, 1, v4
    v_lshl_add_u32 v18, v18, 3, v5
    v_lshl_add_u32 v17, v18, 4, v17
    s_lshl_b32 s43, s41, 8
    v_add_u32 v17, s43, v17
    v_cmp_gt_u32 s[56:57], 8, v3
    v_cmp_gt_u32 s[58:59], 2, v4       ; g4<2 mask
    s_mov_b32 s60, 12288
    v_mul_lo_u32 v18, v3, s60
    s_mul_i32 s43, s41, 384
    v_add_u32 v18, s43, v18
    v_lshl_add_u32 v18, v4, 4, v18
    v_add_u32 v19, {16*12288:#x}, v18
    s_mul_i32 s43, s41, 12288
    v_lshlrev_b32 v20, 4, v2
    v_add_u32 v20, s43, v20
    v_add_u32 v21, 4096, v20
    v_add_u32 v22, 8192, v20
    s_lshr_b32 s43, s2, 3
    s_mul_i32 s43, s43, 5
    s_add_u32 s43, s43, s40
    s_lshl_b32 s48, s43, 13
    v_lshlrev_b32 v23, 4, v2
    v_add_u32 v23, s48, v23
    v_lshrrev_b32 v22, 3, v2
    v_and_b32 v22, 1, v22
    v_lshlrev_b32 v22, 3, v22
    v_lshl_add_u32 v22, v5, 4, v22
    s_lshl_b32 s48, s43, 7
    v_add_u32 v1, s48, v22
    s_mov_b32 s61, {SCALE!r}
    s_lshl_b32 s75, s41, 2
    s_add_u32 s75, s75, s42
    s_mov_b32 s62, 0                   ; step
    s_mov_b32 s65, 0
    """)
    a(f"""
    s_cmp_ge_u32 s40, 2
    s_cselect_b32 s44, s36, s32
    s_cselect_b32 s45, s37, s33
    s_mov_b32 s46, {S*HD*2:#x}
    s_mov_b32 s47, 0x20000
    s_cselect_b32 s48, 1024, 64
    s_mov_b32 s49, {384*1024}
    s_cmp_eq_u32 s40, 3
    s_cselect_b32 s63, 6144, 0
    s_cmp_eq_u32 s40, 1
    s_cselect_b64 vcc, -1, 0
    s_nop 1
    v_cndmask_b32 v18, v18, v19, vcc
    s_cmp_ge_u32 s40, 2
    s_cselect_b64 vcc, -1, 0
    s_nop 1
    v_cndmask_b32 v18, v18, v20, vcc
    s_mul_i32 s64, s40, 6144
    s_add_u32 s64, s64, {LDS_KVX}
    v_lshlrev_b32 v19, 4, v2
    v_add_u32 v19, {LDS_KVX}, v19
    """)
    def prefetch_kv():
        a('s_mov_b32 s66, s63')
        for i in range(6):
            a(f's_add_u32 m0, s64, {i*1024}')
            if i: a('s_add_u32 s66, s66, s48')
            else: a('s_nop 0')
            a('buffer_load_dwordx4 v18, s[44:47], s66 offen sc1 lds')
        a('s_add_u32 s63, s63, s49')
    def read_kv():
        for i in range(12):
            a(f'ds_read_b128 v[{KXF+4*i}:{KXF+4*i+3}], v19 offset:{i*1024}')
        for i in range(12):
            a(f'ds_read_b128 v[{VXF+4*i}:{VXF+4*i+3}], v19 offset:{(12+i)*1024}')
    def prefetch_k():
        for kt in range(2):
            for ks in range(6):
                r = KXF + (kt * 6 + ks) * 4
                a(f'buffer_load_dwordx4 v[{r}:{r+3}], v{18+kt}, s[32:35], s63 offen offset:{ks*64} sc1')
    def prefetch_v():
        for t in range(12):
            r = VXF + 4 * t
            a(f'buffer_load_dwordx4 v[{r}:{r+3}], v{20+t//4}, s[36:39], s64 offen offset:{(t%4)*1024} sc1')
    STAMP_OFF = WS_USED
    if STAMP:
        srd(a, 76, 4, 1 << 20, STAMP_OFF)
        a('s_lshl_b32 s43, s2, 2')
        a('s_add_u32 s43, s43, s40')
        a('s_lshl_b32 s43, s43, 7')
        a('v_mov_b32 v21, s43')
    def stamp(idx, step=32):
        if not STAMP: return
        lbl = f'L_ch_st{idx}'
        a(f's_cmp_lg_u32 s62, {step}')
        a(f's_cbranch_scc1 {lbl}')
        a('s_memrealtime s[80:81]')
        a('s_waitcnt lgkmcnt(0)')
        a('v_mov_b32 v30, s80')
        a('v_mov_b32 v31, s81')
        a('s_mov_b64 s[82:83], exec')
        a('s_mov_b64 exec, 1')
        a(f'buffer_store_dwordx2 v[30:31], v21, s[76:79], 0 offen offset:{idx*8}')
        a('s_mov_b64 exec, s[82:83]')
        a.label(lbl)
    def sleep(n):
        if n: a(f's_sleep {n}')
    def segsig(tag):
        a(f"""
        s_cmp_lg_u32 s40, 0
        s_cbranch_scc1 L_ch_nosig{tag}
        s_lshl_b32 s66, s75, 2
        s_add_u32 s66, s66, 256
        v_mov_b32 v24, s66
        s_add_u32 s66, s62, 1
        v_mov_b32 v25, s66
        s_mov_b64 exec, 1
        buffer_store_dword v25, v24, s[92:95], 0 offen sc1
        s_mov_b64 exec, -1
        """)
        a.label(f'L_ch_nosig{tag}')
    def wait_kv(tag, seg_sreg):
        a(f"""
        s_lshr_b32 s66, s{seg_sreg}, 3
        s_lshr_b32 s67, s{seg_sreg}, 1
        s_add_u32 s67, s67, 48
        s_cmp_lt_u32 s{seg_sreg}, 8
        s_cselect_b32 s66, s67, s66
        s_lshl_b32 s66, s66, 2
        v_mov_b32 v24, s66
        s_mov_b32 s74, 0
        """)
        a.label(f'L_ch_kv{tag}')
        a(f"""
        buffer_load_dword v25, v24, s[92:95], 0 offen sc1
        s_waitcnt vmcnt(0)
        v_readfirstlane_b32 s66, v25
        s_add_u32 s74, s74, 1
        s_cmp_ge_u32 s74, {SPIN_MAX*4}
        s_cbranch_scc1 L_ch_done
        s_cmp_ge_u32 s66, 48
        s_cbranch_scc1 L_ch_kvok{tag}
        s_sleep 8
        s_branch L_ch_kv{tag}
        """)
        a.label(f'L_ch_kvok{tag}')
    XF = int(os.environ.get('XF', '1'))
    a('s_mov_b32 s51, 0')
    if XF:
        a(f"""
        s_getreg_b32 s66, hwreg(HW_REG_XCC_ID)
        s_add_u32 s66, s66, 1
        v_mov_b32 v25, s66
        s_and_b32 s67, s2, 7
        s_lshl_b32 s67, s67, 6
        s_add_u32 s67, s67, 1024
        s_lshr_b32 s68, s2, 3
        s_lshl_b32 s68, s68, 2
        s_add_u32 s68, s68, s67
        v_mov_b32 v24, s68
        s_mov_b64 exec, 1
        buffer_store_dword v25, v24, s[92:95], 0 offen sc1
        s_mov_b64 exec, -1
        v_and_b32 v24, 15, v2
        v_lshl_add_u32 v24, v24, 2, s67
        s_mov_b32 s74, 0
        """)
        a.label('L_ch_xw')
        a(f"""
        buffer_load_dword v25, v24, s[92:95], 0 offen sc1
        s_waitcnt vmcnt(0)
        v_cmp_eq_u32 vcc, 0, v25
        s_add_u32 s74, s74, 1
        s_cmp_ge_u32 s74, {SPIN_MAX}
        s_cbranch_scc1 L_ch_done
        s_nop 1
        s_cbranch_vccnz L_ch_xw
        v_cmp_ne_u32 vcc, s66, v25
        s_nop 4
        s_cmp_eq_u64 vcc, 0
        s_cselect_b32 s51, 1, 0
        """)
    wait_kv(0, 62)
    prefetch_kv()
    a('s_barrier')
    a.label('L_ch_step')
    a(f"""
    s_and_b32 s66, s62, 3
    s_lshl_b32 s67, s66, 14
    s_mul_i32 s68, s66, {QKVR_STRIDE}
    s_mul_i32 s69, s66, {PR_STRIDE}
    s_add_u32 s66, s62, 2
    s_and_b32 s66, s66, 3
    s_mul_i32 s70, s66, {QKVR_STRIDE}
    s_mul_i32 s71, s66, {PR_STRIDE}
    s_add_u32 s66, s62, 1
    s_and_b32 s66, s66, 3
    s_lshl_b32 s72, s66, 14
    s_add_u32 s66, s62, 3
    s_and_b32 s66, s66, 3
    s_lshl_b32 s73, s66, 14
    s_mov_b32 s74, 0
    """)
    if SL[3]:
        a('s_cmp_eq_u32 s62, 0')
        a('s_cbranch_scc1 L_ch_pollA')
        sleep(SL[3])
    a.label('L_ch_pollA')
    def anysent(regs, t):
        a(f'v_max3_u32 v{t}, v{regs[0]}, v{regs[1]}, v{regs[2]}')
        i = 3
        while i < len(regs):
            if i + 1 < len(regs):
                a(f'v_max3_u32 v{t}, v{t}, v{regs[i]}, v{regs[i+1]}'); i += 2
            else:
                a(f'v_max_u32 v{t}, v{t}, v{regs[i]}'); i += 1
        a(f'v_cmp_eq_u32 vcc, -1, v{t}')
    def spin(lbl):
        a(f"""
        s_add_u32 s74, s74, 1
        s_cmp_ge_u32 s74, {SPIN_MAX}
        s_cbranch_scc1 L_ch_done
        s_nop 1
        s_cbranch_vccnz {lbl}
        """)
    def ppoll(tag, loads, base0, alts, n, nl, t):
        sets = [base0] + list(alts)
        K = len(sets)
        for k in range(K - 1):
            loads(sets[k])
        a.label(f'L_ch_poll{tag}')
        for k in range(K):
            cur = sets[k]; nxt = sets[(k + K - 1) % K]
            loads(nxt)
            a(f's_waitcnt vmcnt({nl*(K-1)})')
            anysent(list(range(cur, cur + n)), t)
            a('s_nop 1')
            a(f's_cbranch_vccz L_ch_ok{tag}{k}')
        a(f"""
        s_add_u32 s74, s74, 1
        s_cmp_ge_u32 s74, {SPIN_MAX}
        s_cbranch_scc1 L_ch_done
        s_branch L_ch_poll{tag}
        """)
        for k in range(K - 1, 0, -1):
            a.label(f'L_ch_ok{tag}{k}')
            for r in range(n):
                a(f'v_mov_b32 v{base0+r}, v{sets[k]+r}')
            a(f's_branch L_ch_ok{tag}0')
        a.label(f'L_ch_ok{tag}0')
    def ldA(b):
        for ks in range(5):
            a(f'buffer_load_dwordx4 v[{b+4*ks}:{b+4*ks+3}], v6, s[16:19], s67 offen offset:{ks*512} sc1')
    ppoll('A_', ldA, MEMF, PA, 20, 5, TMP)
    stamp(6, 33); stamp(0)
    a('s_cmp_eq_u32 s42, 2')
    a('s_cbranch_scc1 L_ch_p1_mix')
    a('s_cmp_eq_u32 s42, 3')
    a('s_cbranch_scc1 L_ch_p1_n')
    def p1(nfrom):
        for ks in range(5):
            for t in range(9):
                acc = ACC1 + 4 * t
                w = f'a[{AW1+(t*5+ks)*4}:{AW1+(t*5+ks)*4+3}]'
                m = f'v[{MEMF+4*ks}:{MEMF+4*ks+3}]'
                c = '0' if ks == 0 else f'v[{acc}:{acc+3}]'
                if t < nfrom:
                    a(f'v_mfma_f32_16x16x32_bf16 v[{acc}:{acc+3}], {w}, {m}, {c}')
                else:
                    a(f'v_mfma_f32_16x16x32_bf16 v[{acc}:{acc+3}], {m}, {w}, {c}')
    p1(9)
    a('s_branch L_ch_p1_done')
    a.label('L_ch_p1_mix')
    p1(6)
    a('s_branch L_ch_p1_done')
    a.label('L_ch_p1_n')
    p1(0)
    a.label('L_ch_p1_done')
    stamp(14)
    a('s_nop 7')
    a('s_nop 1')
    for t in range(9):
        a(f'ds_write_b128 v8, v[{ACC1+4*t}:{ACC1+4*t+3}] offset:{t*1024}')
    a('s_waitcnt vmcnt(0) lgkmcnt(0)' if NP > 1 else 's_waitcnt lgkmcnt(0)')
    a('s_barrier')
    stamp(15)
    a('s_mov_b64 exec, s[52:53]')
    a('s_cbranch_execz L_ch_nopub')
    R = MEMF
    for w in range(4):
        a(f'ds_read_b128 v[{R+8*w}:{R+8*w+3}], v9 offset:{w*9216}')
        a(f'ds_read_b128 v[{R+8*w+4}:{R+8*w+7}], v9 offset:{w*9216+256}')
    a('s_waitcnt lgkmcnt(0)')
    for j in range(8):
        a(f'v_add_f32 v{R+j}, v{R+j}, v{R+8+j}')
        a(f'v_add_f32 v{R+16+j}, v{R+16+j}, v{R+24+j}')
        a(f'v_add_f32 v{R+j}, v{R+j}, v{R+16+j}')
    for j in range(4):
        a(f'v_cvt_pk_bf16_f32 v{R+8+j}, v{R+2*j}, v{R+2*j+1}')
        a(f'v_min_u32 v{R+8+j}, 0xfffffffe, v{R+8+j}')
    a('s_cmp_eq_u32 s51, 1')
    a('s_cbranch_scc1 L_ch_pubf')
    a(f'buffer_store_dwordx4 v[{R+8}:{R+11}], v10, s[20:23], s68 offen sc1')
    a('s_branch L_ch_pubd')
    a.label('L_ch_pubf')
    a(f'buffer_store_dwordx4 v[{R+8}:{R+11}], v10, s[20:23], s68 offen')
    a.label('L_ch_pubd')
    a('s_mov_b64 exec, s[54:55]')
    a('s_cbranch_execz L_ch_nopub')
    a(f'buffer_store_dwordx4 v[{R+8}:{R+11}], v11, s[28:31], s65 offen sc1')
    a.label('L_ch_nopub')
    a('s_mov_b64 exec, -1')
    stamp(1)
    a(f's_cmp_eq_u32 s62, {NSEG-1}')
    a('s_cbranch_scc1 L_ch_last')
    read_kv()
    a('s_mov_b32 s74, 0')
    sleep(SL[1])
    def ldB(b):
        a(f'buffer_load_dwordx4 v[{b}:{b+3}], v12, s[20:23], s68 offen sc1')
        a(f'buffer_load_dwordx4 v[{b+4}:{b+7}], v12, s[20:23], s68 offen offset:1024 sc1')
        a(f'buffer_load_dwordx4 v[{b+8}:{b+11}], v13, s[20:23], s68 offen sc1')
    ppoll('B_', ldB, R, PB, 12, 3, TMP)
    stamp(2)
    a(f'ds_write_b128 v15, v[{R}:{R+3}]')
    a(f'ds_write_b128 v15, v[{R+4}:{R+7}] offset:1024')
    a(f'ds_write_b128 v16, v[{R+8}:{R+11}]')
    a('s_waitcnt lgkmcnt(0)')
    a('s_barrier')
    stamp(7)
    a('s_add_u32 s90, s62, 1')
    a('s_cmp_lt_u32 s90, 8')
    a('s_cselect_b32 s67, 1, 7')
    a('s_and_b32 s66, s90, s67')
    a('s_cmp_lg_u32 s66, 0')
    a('s_cbranch_scc1 L_ch_kvok1')
    wait_kv(1, 90)
    prefetch_kv()
    for ks in range(6):
        a(f'ds_read_b128 v[{QF+4*ks}:{QF+4*ks+3}], v7 offset:{ks*512}')
        a(f'ds_read_b128 v[{KMF+4*ks}:{KMF+4*ks+3}], v7 offset:{3072+ks*512}')
    a('s_waitcnt lgkmcnt(0)')
    for t in range(12):
        a(f'ds_read_b64 v[{VMF+2*t}:{VMF+2*t+1}], v14 offset:{t*256}')
    for ks in range(6):
        q = f'v[{QF+4*ks}:{QF+4*ks+3}]'
        c = (lambda b: '0') if ks == 0 else (lambda b: f'v[{b}:{b+3}]')
        a(f'v_mfma_f32_16x16x32_bf16 v[{SACC}:{SACC+3}], v[{KMF+4*ks}:{KMF+4*ks+3}], {q}, {c(SACC)}')
        a(f'v_mfma_f32_16x16x32_bf16 v[{SACC+4}:{SACC+7}], v[{KXF+4*ks}:{KXF+4*ks+3}], {q}, {c(SACC+4)}')
        a(f'v_mfma_f32_16x16x32_bf16 v[{SACC+8}:{SACC+11}], v[{KXF+24+4*ks}:{KXF+24+4*ks+3}], {q}, {c(SACC+8)}')
    a('v_mov_b32 v26, 0xce6e6b28')
    a('s_nop 7')
    a('s_nop 1')
    stamp(8)
    stamp(9)
    softmax_block(a, list(range(SACC, SACC + 12)), {SACC + r: 's[58:59]' for r in range(4)}, 61, 24, 25, 26)
    a(f'v_cvt_pk_bf16_f32 v{PF}, v{SACC+4}, v{SACC+5}')
    a(f'v_cvt_pk_bf16_f32 v{PF+1}, v{SACC+6}, v{SACC+7}')
    a(f'v_cvt_pk_bf16_f32 v{PF+2}, v{SACC+8}, v{SACC+9}')
    a(f'v_cvt_pk_bf16_f32 v{PF+3}, v{SACC+10}, v{SACC+11}')
    a(f'v_cvt_pk_bf16_f32 v{PF+4}, v{SACC}, v{SACC+1}')
    a(f'v_cvt_pk_bf16_f32 v{PF+5}, v{SACC+2}, v{SACC+3}')
    stamp(10)
    a('s_waitcnt vmcnt(0) lgkmcnt(0)' if NP > 1 else 's_waitcnt lgkmcnt(0)')
    a('s_nop 0')
    for t in range(12):
        o = OACC + 4 * t
        a(f'v_mfma_f32_16x16x32_bf16 v[{o}:{o+3}], v[{VXF+4*t}:{VXF+4*t+3}], v[{PF}:{PF+3}], 0')
    for t in range(12):
        o = OACC + 4 * t
        a(f'v_mfma_f32_16x16x16_bf16 v[{o}:{o+3}], v[{VMF+2*t}:{VMF+2*t+1}], v[{PF+4}:{PF+5}], v[{o}:{o+3}]')
    a('s_nop 7')
    a('s_nop 1')
    stamp(11)
    stamp(12)
    for t in range(12):
        o = OACC + 4 * t
        a(f'v_cvt_pk_bf16_f32 v{OF+2*t}, v{o}, v{o+1}')
        a(f'v_cvt_pk_bf16_f32 v{OF+2*t+1}, v{o+2}, v{o+3}')
    a('s_nop 1')
    for ks2 in range(6):
        for tt in range(3):
            p = PACC + 4 * tt
            w = AWO + (tt * 6 + ks2) * 4
            c = '0' if ks2 == 0 else f'v[{p}:{p+3}]'
            a(f'v_mfma_f32_16x16x32_bf16 v[{p}:{p+3}], a[{w}:{w+3}], v[{OF+4*ks2}:{OF+4*ks2+3}], {c}')
    a('s_nop 7')
    a('s_nop 1')
    stamp(13)
    for r in range(PACC, PACC + 12):
        a(f'v_min_u32 v{r}, 0xfffffffe, v{r}')
    for r in range(28, 32):
        a(f'v_mov_b32 v{r}, -1')
    a('s_mov_b64 exec, s[56:57]')
    a(f'buffer_store_dwordx4 v[{PACC}:{PACC+3}], v17, s[24:27], s69 offen sc1')
    a('s_add_u32 s66, s69, 16384')
    a(f'buffer_store_dwordx4 v[{PACC+4}:{PACC+7}], v17, s[24:27], s66 offen sc1')
    a('s_cmp_ge_u32 s40, 2')
    a('s_cbranch_scc1 L_ch_no3')
    a('s_add_u32 s66, s69, 32768')
    a(f'buffer_store_dwordx4 v[{PACC+8}:{PACC+11}], v17, s[24:27], s66 offen sc1')
    a('s_add_u32 s66, s71, 32768')
    a('buffer_store_dwordx4 v[28:31], v17, s[24:27], s66 offen sc1')
    a.label('L_ch_no3')
    a('buffer_store_dwordx4 v[28:31], v17, s[24:27], s71 offen sc1')
    a('s_add_u32 s66, s71, 16384')
    a('buffer_store_dwordx4 v[28:31], v17, s[24:27], s66 offen sc1')
    a('s_mov_b64 exec, s[52:53]')
    a('s_cbranch_execz L_ch_noclr')
    a('s_cmp_eq_u32 s51, 1')
    a('s_cbranch_scc1 L_ch_clrf')
    a('buffer_store_dwordx4 v[28:31], v10, s[20:23], s70 offen sc1')
    a('s_branch L_ch_noclr')
    a.label('L_ch_clrf')
    a('buffer_store_dwordx4 v[28:31], v10, s[20:23], s70 offen')
    a.label('L_ch_noclr')
    a('s_mov_b64 exec, -1')
    stamp(3)
    a('s_mov_b32 s74, 0')
    sleep(SL[2])
    a('v_add_u32 v27, 4096, v23')
    a('s_cmp_eq_u32 s40, 0')
    a('s_cbranch_scc1 L_ch_red2')
    def red_loads(base, extra):
        for i in range(8):
            a(f'buffer_load_dwordx4 v[{base+4*i}:{base+4*i+3}], v{23 if i<4 else 27}, s[24:27], {extra} offen offset:{(i%4)*1024} sc1')
    def red_sum(base, F):
        for k in range(4):
            for j in range(4):
                a(f'v_add_f32 v{F+4*k+j}, v{base+4*k+j}, v{base+4*(k+4)+j}')
        for i in (2, 1):
            for k in range(i):
                for j in range(4):
                    a(f'v_add_f32 v{F+4*k+j}, v{F+4*k+j}, v{F+4*(k+i)+j}')
        for j in range(4):
            xgroup_reduce(a, F + j, TMP + 1, 'v_add_f32')
        a(f'v_cvt_pk_bf16_f32 v{F+4}, v{F}, v{F+1}')
        a(f'v_cvt_pk_bf16_f32 v{F+5}, v{F+2}, v{F+3}')
        a(f'v_min_u32 v{F+4}, 0xfffffffe, v{F+4}')
        a(f'v_min_u32 v{F+5}, 0xfffffffe, v{F+5}')
    def red_pub(F, off, tag):
        a('s_mov_b64 exec, 0xffff')
        a('s_cmp_eq_u32 s51, 1')
        a(f's_cbranch_scc1 L_ch_rpf{tag}')
        a(f'buffer_store_dwordx2 v[{F+4}:{F+5}], v1, s[16:19], s72 offen offset:{off} sc1')
        a(f'buffer_store_dwordx2 v[28:29], v1, s[16:19], s73 offen offset:{off} sc1')
        a(f's_branch L_ch_rpd{tag}')
        a.label(f'L_ch_rpf{tag}')
        a(f'buffer_store_dwordx2 v[{F+4}:{F+5}], v1, s[16:19], s72 offen offset:{off}')
        a(f'buffer_store_dwordx2 v[28:29], v1, s[16:19], s73 offen offset:{off}')
        a.label(f'L_ch_rpd{tag}')
        a('s_mov_b64 exec, -1')
    a.label('L_ch_pollC1')
    red_loads(32, 's69')
    a('s_waitcnt vmcnt(0)')
    anysent(list(range(32, 64)), TMP + 1)
    spin('L_ch_pollC1')
    stamp(4)
    red_sum(32, 184)
    red_pub(184, 0, 'a')
    a('s_branch L_ch_next')
    a.label('L_ch_red2')
    a('s_add_u32 s66, s69, 32768')
    a.label('L_ch_pollC2')
    red_loads(32, 's69')
    red_loads(64, 's66')
    a('s_waitcnt vmcnt(0)')
    anysent(list(range(32, 96)), TMP + 1)
    spin('L_ch_pollC2')
    red_sum(32, 184)
    red_sum(64, 200)
    red_pub(184, 0, 'b')
    red_pub(200, 512, 'c')
    a.label('L_ch_next')
    stamp(5)
    a(f"""
    s_add_u32 s62, s62, 1
    s_add_u32 s65, s65, {32*6144}
    s_branch L_ch_step
    """)
    a.label('L_ch_last')
    a('s_waitcnt vmcnt(0)')
    a('s_barrier')
    segsig('b')
    a('s_branch L_ch_done')
    a.label('L_ch_worker')
    base = dict(BM=256, BN=256, WR=2, WC=2, a_src=('ws', XN_OFF, S*DM*2), lda=DM, nk=DM//32, agpr=True, tiles=(8, 24, 1))
    cK = dict(base, name='wk', w_srcs=[KA_WK], ldw=HD, w_bytes=DM*HD*2, form='T', epi='ffn2', ldo=HD, out_off=KX_OFF, out_bytes=S*HD*2, sc1=True)
    cV = dict(base, name='wv', w_srcs=[KA_WV], ldw=HD, w_bytes=DM*HD*2, form='N', epi='v', sc1=True)
    cQ = dict(base, name='wq', w_srcs=[KA_WQ], ldw=HD, w_bytes=DM*HD*2, form='T', epi='ffn2', ldo=HD, out_off=QX_OFF, out_bytes=S*HD*2)
    cF = dict(base, name='wf', nb=2, w_srcs=[KA_WG, KA_WU], ldw=FF, w_bytes=DM*FF*2, form='T', epi='ffn1', ldo=FF, out_off=H_OFF, out_bytes=S*FF*2, tiles=(8, 12, 1))
    cQ['sc1'] = True; cF['sc1'] = True
    cG = dict(name='wg', BM=128, BN=128, WR=2, WC=2, a_src=('ws', H_OFF, S*FF*2), lda=FF, nk=FF//32, a_sc1=True,
              w_srcs=[KA_WD], ldw=DM, w_bytes=FF*DM*2, tiles=(16, 5, 1), form='T', epi='ffn2', ldo=DM, out_off=BO_OFF, out_bytes=S*DM*2, nst=8)
    cO = dict(name='wo', BM=128, BN=128, WR=2, WC=2, a_src=('ws', O_OFF, S*HD*2), lda=HD, nk=HD//KSP//32, ksplit_len=HD//KSP, a_sc1=True,
              w_srcs=[KA_WO], ldw=DM, w_bytes=HD*DM*2, tiles=(16, 5, KSP), form='T', epi='part', ldo=DM, nst=8)
    a(f"""
    s_load_dwordx2 s[76:77], s[0:1], {KA_WD}
    s_mov_b32 s78, s12
    s_mov_b32 s79, s13                 ; Wo
    s_waitcnt lgkmcnt(0)
    s_mov_b32 s44, s40
    s_mov_b32 s80, s40
    s_mov_b32 s96, s6
    s_mov_b32 s97, s7                  ; Wq
    s_mov_b32 s98, s8
    s_mov_b32 s99, s9                  ; Wk
    s_mov_b32 s100, s10
    s_mov_b32 s101, s11                ; Wv
    s_sub_u32 s91, s2, 129
    s_mov_b32 s42, 0
    """)
    lds_w = 0
    cKs = dict(cK, name='wks', BM=64, tiles=(32, 24, 1))
    cVs = dict(cV, name='wvs', BM=64, tiles=(32, 24, 1))
    a.label('L_w_s')
    a('s_cmp_ge_u32 s91, 192')
    a('s_cbranch_scc1 L_w_kv0')
    divmod_const(a, 91, 41, 40, 48)
    a('s_cmp_ge_u32 s40, 24')
    a('s_cbranch_scc1 L_w_sv')
    a('s_mov_b32 s6, s98'); a('s_mov_b32 s7, s99')
    gemm_body(a, cKs, 'L_wks')
    a('s_branch L_w_ssig')
    a.label('L_w_sv')
    a('s_sub_u32 s40, s40, 24')
    a('s_mov_b32 s6, s100'); a('s_mov_b32 s7, s101')
    gemm_body(a, cVs, 'L_wvs')
    a.label('L_w_ssig')
    a(f"""
    s_waitcnt vmcnt(0)
    s_barrier
    s_cmp_lg_u32 s44, 0
    s_cbranch_scc1 L_w_snosig
    s_lshl_b32 s66, s41, 2
    s_add_u32 s66, s66, 192
    v_mov_b32 v24, s66
    v_mov_b32 v25, 1
    s_mov_b64 exec, 1
    buffer_atomic_add v25, v24, s[92:95], 0 offen sc1
    s_mov_b64 exec, -1
    """)
    a.label('L_w_snosig')
    a(f's_add_u32 s91, s91, {NWORK}')
    a('s_branch L_w_s')
    a.label('L_w_kv0')
    a('s_sub_u32 s91, s91, 192')
    a.label('L_w_kv')
    a('s_cmp_ge_u32 s91, 336')
    a('s_cbranch_scc1 L_w_q0')
    divmod_const(a, 91, 41, 40, 48)
    a('s_add_u32 s41, s41, 1')
    a('s_cmp_ge_u32 s40, 24')
    a('s_cbranch_scc1 L_w_v')
    a('s_mov_b32 s6, s98'); a('s_mov_b32 s7, s99')
    _, lds_w = gemm_body(a, cK, 'L_wk')
    a('s_branch L_w_kvsig')
    a.label('L_w_v')
    a('s_sub_u32 s40, s40, 24')
    a('s_mov_b32 s6, s100'); a('s_mov_b32 s7, s101')
    gemm_body(a, cV, 'L_wv')
    a.label('L_w_kvsig')
    a(f"""
    s_waitcnt vmcnt(0)
    s_barrier
    s_cmp_lg_u32 s44, 0
    s_cbranch_scc1 L_w_nosig
    s_lshl_b32 s66, s41, 2
    v_mov_b32 v24, s66
    v_mov_b32 v25, 1
    s_mov_b64 exec, 1
    buffer_atomic_add v25, v24, s[92:95], 0 offen sc1
    s_mov_b64 exec, -1
    """)
    a.label('L_w_nosig')
    a(f's_add_u32 s91, s91, {NWORK}')
    a('s_branch L_w_kv')
    def wsig(idx_sreg, base, tag):
        a(f"""
        s_waitcnt vmcnt(0)
        s_barrier
        s_cmp_lg_u32 s44, 0
        s_cbranch_scc1 L_w_ns{tag}
        s_lshl_b32 s66, s{idx_sreg}, 2
        s_add_u32 s66, s66, {base*4}
        v_mov_b32 v24, s66
        v_mov_b32 v25, 1
        s_mov_b64 exec, 1
        buffer_atomic_add v25, v24, s[92:95], 0 offen sc1
        s_mov_b64 exec, -1
        """)
        a.label(f'L_w_ns{tag}')
    def wwait(idx_sreg, base, target, tag):
        a(f"""
        s_cmp_lg_u32 s80, 0
        s_cbranch_scc1 L_w_ok{tag}
        s_lshl_b32 s66, s{idx_sreg}, 2
        s_add_u32 s66, s66, {base*4}
        v_mov_b32 v24, s66
        s_mov_b32 s74, 0
        """)
        a.label(f'L_w_wt{tag}')
        a(f"""
        buffer_load_dword v25, v24, s[92:95], 0 offen sc1
        s_waitcnt vmcnt(0)
        v_readfirstlane_b32 s66, v25
        s_add_u32 s74, s74, 1
        s_cmp_ge_u32 s74, {SPIN_MAX*4}
        s_cbranch_scc1 L_ch_done
        s_cmp_ge_u32 s66, {target}
        s_cbranch_scc1 L_w_ok{tag}
        s_sleep {WSL}
        s_branch L_w_wt{tag}
        """)
        a.label(f'L_w_ok{tag}')
        a('s_barrier')
    a.label('L_w_q0')
    a('s_sub_u32 s91, s91, 336')
    a.label('L_w_q')
    a('s_cmp_ge_u32 s91, 192')
    a('s_cbranch_scc1 L_w_f0')
    divmod_const(a, 91, 41, 40, 24)
    a('s_mov_b32 s6, s96'); a('s_mov_b32 s7, s97')
    gemm_body(a, cQ, 'L_wq')
    wsig(41, 8, 'q')
    a(f's_add_u32 s91, s91, {NWORK}')
    a('s_branch L_w_q')
    a.label('L_w_f0')
    a('s_sub_u32 s91, s91, 192')
    a.label('L_w_f')
    a('s_cmp_ge_u32 s91, 96')
    a('s_cbranch_scc1 L_w_g0')
    divmod_const(a, 91, 41, 40, 12)
    a('s_mov_b32 s6, s86'); a('s_mov_b32 s7, s87')
    a('s_mov_b32 s8, s88'); a('s_mov_b32 s9, s89')
    gemm_body(a, cF, 'L_wf')
    wsig(41, 16, 'f')
    a(f's_add_u32 s91, s91, {NWORK}')
    a('s_branch L_w_f')
    a.label('L_w_g0')
    a('s_sub_u32 s91, s91, 96')
    a.label('L_w_g')
    a('s_cmp_ge_u32 s91, 80')
    a('s_cbranch_scc1 L_w_a0')
    divmod_const(a, 91, 41, 40, 5)
    a('s_lshr_b32 s90, s41, 1')
    wwait(90, 16, 12, 'g')
    a('s_mov_b32 s6, s76'); a('s_mov_b32 s7, s77')
    a('s_mov_b32 s42, 0')
    gemm_body(a, cG, 'L_wg')
    a('s_barrier')
    a(f's_add_u32 s91, s91, {NWORK}')
    a('s_branch L_w_g')
    INK = os.environ.get('INK', 'all')
    a.label('L_w_a0')
    if INK == 'none':
        a('s_branch L_ch_done')
    a('s_sub_u32 s91, s91, 80')
    a.label('L_w_a')
    a(f's_cmp_ge_u32 s91, {16*(32+5*KSP)}')
    a('s_cbranch_scc1 L_ch_done')
    divmod_const(a, 91, 82, 83, 32+5*KSP)
    a('s_cmp_ge_u32 s83, 32')
    a('s_cbranch_scc1 L_w_o')
    a("""
    s_lshr_b32 s41, s83, 3
    s_lshl_b32 s90, s82, 2
    s_add_u32 s41, s41, s90            ; seg
    s_and_b32 s42, s83, 7
    s_lshl_b32 s42, s42, 2
    s_add_u32 s42, s42, s44            ; head
    s_lshr_b32 s90, s82, 1
    """)
    wwait(90, 8, 24, 'aq')
    a(f"""
    s_cmp_lg_u32 s80, 0
    s_cbranch_scc1 L_w_okas
    v_mov_b32 v24, 120
    s_mov_b32 s74, 0
    """)
    a.label('L_w_wtas')
    a(f"""
    buffer_load_dword v25, v24, s[92:95], 0 offen sc1
    s_waitcnt vmcnt(0)
    v_readfirstlane_b32 s66, v25
    s_add_u32 s74, s74, 1
    s_cmp_ge_u32 s74, {SPIN_MAX*4}
    s_cbranch_scc1 L_ch_done
    s_cmp_gt_u32 s66, s41
    s_cbranch_scc1 L_w_okas
    s_sleep {WSL}
    s_branch L_w_wtas
    """)
    a.label('L_w_okas')
    a('s_barrier')
    attn_body(a, ' sc1')
    a('s_mov_b32 s44, s80')
    wsig(82, 32, 'a')
    a(f's_add_u32 s91, s91, {NWORK}')
    a('s_branch L_w_a')
    a.label('L_w_o')
    if INK == 'attn':
        a(f's_add_u32 s91, s91, {NWORK}')
        a('s_branch L_w_a')
    a('s_sub_u32 s83, s83, 32')
    divmod_const(a, 83, 42, 40, 5)
    a('s_mov_b32 s41, s82')
    wwait(82, 32, 32, 'o')
    a('s_mov_b32 s6, s78'); a('s_mov_b32 s7, s79')
    gemm_body(a, cO, 'L_wo')
    a('s_barrier')
    a(f's_add_u32 s91, s91, {NWORK}')
    a('s_branch L_w_a')
    LDS_BYTES = max(LDS_BYTES, lds_w, 8*16384)
    a.label('L_ch_monitor')
    a(f"""
    s_cmp_lg_u32 s40, 0
    s_cbranch_scc1 L_ch_done
    v_lshlrev_b32 v6, 4, v2
    v_add_u32 v7, 4096, v6
    v_mov_b32 v24, 120
    s_mov_b32 s62, 1
    """)
    a.label('L_ch_mstep')
    a(f"""
    s_sub_u32 s66, s62, 1
    s_and_b32 s66, s66, 3
    s_mul_i32 s67, s66, {PR_STRIDE}
    s_mov_b32 s74, 0
    """)
    a.label('L_ch_mpoll')
    for q in range(4):
        a(f's_add_u32 s68, s67, {q*20*8192}')
        for i in range(8):
            a(f'buffer_load_dwordx4 v[{32+32*q+4*i}:{35+32*q+4*i}], v{6 + i//4}, s[24:27], s68 offen offset:{(i%4)*1024} sc1')
    a('s_waitcnt vmcnt(0)')
    anysent(list(range(32, 160)), TMP + 1)
    a(f"""
    s_add_u32 s74, s74, 1
    s_cmp_ge_u32 s74, {SPIN_MAX}
    s_cbranch_scc1 L_ch_done
    s_cbranch_vccz L_ch_mok
    s_sleep 16
    s_branch L_ch_mpoll
    """)
    a.label('L_ch_mok')
    a(f"""
    v_mov_b32 v25, s62
    s_mov_b64 exec, 1
    buffer_store_dword v25, v24, s[92:95], 0 offen sc1
    s_mov_b64 exec, -1
    s_add_u32 s62, s62, 1
    s_cmp_lt_u32 s62, {NSEG}
    s_cbranch_scc1 L_ch_mstep
    v_lshlrev_b32 v6, 3, v2
    v_add_u32 v6, 256, v6
    s_mov_b32 s74, 0
    """)
    a.label('L_ch_mlast')
    a(f"""
    buffer_load_dwordx2 v[32:33], v6, s[92:95], 0 offen sc1
    s_waitcnt vmcnt(0)
    v_min_u32 v32, v32, v33
    v_cmp_gt_u32 vcc, {NSEG}, v32
    s_add_u32 s74, s74, 1
    s_cmp_ge_u32 s74, {SPIN_MAX}
    s_cbranch_scc1 L_ch_done
    s_cbranch_vccnz L_ch_mlast
    v_mov_b32 v25, {NSEG}
    s_mov_b64 exec, 1
    buffer_store_dword v25, v24, s[92:95], 0 offen sc1
    s_mov_b64 exec, -1
    s_branch L_ch_done
    """)
    a.label('L_ch_done')
    if os.environ.get('ENDSTAMP'):
        a('s_cmp_ge_u32 s2, 256')
        a('s_cbranch_scc1 L_ch_done2')
        srd(a, 76, 4, 1 << 20, WS_USED)
        a('s_memrealtime s[80:81]')
        a('s_waitcnt lgkmcnt(0)')
        a('v_mov_b32 v30, s80')
        a('v_mov_b32 v31, s81')
        a('s_lshl_b32 s43, s2, 3')
        a('v_mov_b32 v1, s43')
        a('s_mov_b64 exec, 1')
        a('buffer_store_dwordx2 v[30:31], v1, s[76:79], 0 offen')
        a.label('L_ch_done2')
    a('s_endpgm')
    return name, kernel_desc(name, 512, accum=256), (NWG, 256, LDS_BYTES)
```

```python
from common import *

def gen_ln(a):
    name = 'ln_kernel'
    kernel_header(a, name)
    a(f"""
    s_cmp_ge_u32 s2, 512
    s_cbranch_scc1 L_ln_done
    s_load_dwordx2 s[4:5], s[0:1], {KA_X}
    s_load_dwordx2 s[6:7], s[0:1], {KA_MEM0}
    s_load_dwordx2 s[8:9], s[0:1], {KA_WS}
    s_waitcnt lgkmcnt(0)
    """)
    srd(a, 12, 4, S * DM * 2)
    srd(a, 16, 8, S * DM * 2, XN_OFF)
    srd(a, 20, 6, MM * DM * 2)
    fill_base = MEMR_OFF
    fill_bytes = RING_END - fill_base
    srd(a, 24, 8, fill_bytes, fill_base)
    srd(a, 28, 8, 8 * 65536, MEMR_OFF)
    srd(a, 36, 8, 4096, CNT_OFF)
    a(f"""
    v_lshrrev_b32 v1, 6, v0            ; wave
    v_and_b32 v2, 63, v0               ; lane
    s_lshl_b32 s3, s2, 2
    v_add_u32 v3, s3, v1               ; row
    v_mul_u32_u24 v3, 1280, v3
    v_lshl_add_u32 v3, v2, 2, v3
    buffer_load_dword v10, v3, s[12:15], 0 offen
    buffer_load_dword v11, v3, s[12:15], 0 offen offset:256
    buffer_load_dword v12, v3, s[12:15], 0 offen offset:512
    buffer_load_dword v13, v3, s[12:15], 0 offen offset:768
    buffer_load_dword v14, v3, s[12:15], 0 offen offset:1024
    s_lshl_b32 s3, s2, 8
    v_add_u32 v4, s3, v0               ; gid
    v_lshlrev_b32 v5, 4, v4            ; gid*16
    v_mov_b32 v40, -1
    v_mov_b32 v41, -1
    v_mov_b32 v42, -1
    v_mov_b32 v43, -1
    v_add_u32 v6, {131072*16:#x}, v5
    v_add_u32 v7, {2*131072*16:#x}, v5
    v_and_b32 v8, 0xffff, v5
    v_cmp_le_u32 vcc, 0x4000, v8
    s_mov_b32 s34, 0x80000
    v_cmp_le_u32 s[32:33], s34, v5
    s_or_b64 vcc, vcc, s[32:33]
    s_and_saveexec_b64 s[32:33], vcc
    s_cbranch_execz L_ln_nofill
    buffer_store_dwordx4 v[40:43], v5, s[24:27], 0 offen
L_ln_nofill:
    s_mov_b64 exec, s[32:33]
    buffer_store_dwordx4 v[40:43], v6, s[24:27], 0 offen
    buffer_store_dwordx4 v[40:43], v7, s[24:27], 0 offen
    v_lshlrev_b32 v7, 2, v4
    v_mov_b32 v8, 0
    buffer_store_dword v8, v7, s[36:39], 0 offen
    v_and_b32 v9, 1023, v4
    v_lshrrev_b32 v15, 10, v4          ; group
    v_and_b32 v6, 7, v9                ; row
    v_lshrrev_b32 v7, 3, v9            ; line r
    v_mul_u32_u24 v8, 1280, v6
    v_lshl_add_u32 v8, v7, 4, v8
    v_cmp_gt_u32 vcc, 640, v9
    v_cmp_gt_u32 s[32:33], 8, v15
    s_and_b64 vcc, vcc, s[32:33]
    s_and_saveexec_b64 s[32:33], vcc
    s_cbranch_execz L_ln_nomem
    buffer_load_dwordx4 v[44:47], v8, s[20:23], 0 offen
    v_lshlrev_b32 v9, 7, v7
    v_lshl_add_u32 v9, v6, 4, v9
    v_lshl_add_u32 v9, v15, 16, v9     ; + group*65536
    s_waitcnt vmcnt(0)
    v_min_u32 v44, 0xfffffffe, v44
    v_min_u32 v45, 0xfffffffe, v45
    v_min_u32 v46, 0xfffffffe, v46
    v_min_u32 v47, 0xfffffffe, v47
    buffer_store_dwordx4 v[44:47], v9, s[28:31], 0 offen
    """)
    a.label('L_ln_nomem')
    a("""
    s_mov_b64 exec, s[32:33]
    s_waitcnt vmcnt(0)
    """)
    for i in range(5):
        a(f'v_lshlrev_b32 v{20+2*i}, 16, v{10+i}')
        a(f'v_and_b32 v{21+2*i}, 0xffff0000, v{10+i}')
    def wave_sum(reg):
        for x in (0x041F, 0x081F, 0x101F, 0x201F, 0x401F):
            a(f'ds_swizzle_b32 v31, v{reg} offset:{x:#x}')
            a('s_waitcnt lgkmcnt(0)')
            a(f'v_add_f32 v{reg}, v{reg}, v31')
        a('s_nop 0')
        a(f'v_readlane_b32 s34, v{reg}, 0')
        a(f'v_readlane_b32 s35, v{reg}, 32')
        a('s_nop 1')
        a(f'v_mov_b32 v{reg}, s34')
        a(f'v_add_f32 v{reg}, s35, v{reg}')
    a('v_add_f32 v30, v20, v21')
    for i in range(2, 10):
        a(f'v_add_f32 v30, v30, v{20+i}')
    wave_sum(30)
    a(f'v_mul_f32 v30, {1.0/640!r}, v30')
    a('v_sub_f32 v32, v20, v30')
    a('v_mul_f32 v33, v32, v32')
    for i in range(1, 10):
        a(f'v_sub_f32 v32, v{20+i}, v30')
        a('v_fmac_f32 v33, v32, v32')
    wave_sum(33)
    a(f'v_mul_f32 v33, {1.0/640!r}, v33')
    bf16r(a, 30, 30)
    bf16r(a, 33, 33)
    a('v_add_f32 v33, 0x3727c5ac, v33')
    bf16r(a, 33, 33)
    a('v_sqrt_f32 v33, v33')
    a('s_nop 0')
    bf16r(a, 33, 33)
    a('v_rcp_f32 v34, v33')
    a('s_nop 0')
    for i in range(10):
        r = 20 + i
        a(f'v_sub_f32 v{r}, v{r}, v30')
        bf16r(a, r, r)
        a(f'v_mul_f32 v35, v{r}, v34')
        a(f'v_fma_f32 v36, -v35, v33, v{r}')
        a(f'v_fma_f32 v{r}, v36, v34, v35')
    for i in range(5):
        a(f'v_cvt_pk_bf16_f32 v{10+i}, v{20+2*i}, v{21+2*i}')
    a("""
    buffer_store_dword v10, v3, s[16:19], 0 offen
    buffer_store_dword v11, v3, s[16:19], 0 offen offset:256
    buffer_store_dword v12, v3, s[16:19], 0 offen offset:512
    buffer_store_dword v13, v3, s[16:19], 0 offen offset:768
    buffer_store_dword v14, v3, s[16:19], 0 offen offset:1024
    """)
    a.label('L_ln_done')
    a('s_endpgm')
    return name, kernel_desc(name, 64), (512, 256, 0)
```

```python
import sys, os
from common import *
from k_ln import gen_ln
from k_gemm import gen_gemm, GEMMS
from k_attn import gen_attn, gen_final
from k_chain import gen_chain

order_names = ('gout_kernel',)
def build(SL=(0,0,0,0), STAMP=False):
    a = Asm()
    ks = {}
    order = []
    def add(r):
        ks[r[0]] = r
    add(gen_ln(a))
    for g in GEMMS:
        if g['name'] in order_names and os.environ.get('INK', 'all') != 'all':
            add(gen_gemm(a, g))
    add(gen_chain(a, SL, STAMP))
    add(gen_final(a))
    if os.environ.get('INK', 'all') == 'none':
        add(gen_attn(a))

    INK = os.environ.get('INK', 'all')
    order = {'all': ['ln_kernel', 'chain_kernel', 'fin_kernel'],
             'attn': ['ln_kernel', 'chain_kernel', 'gout_kernel', 'fin_kernel'],
             'none': ['ln_kernel', 'chain_kernel', 'attn_kernel', 'gout_kernel', 'fin_kernel']}[INK]
    hdr = open('parallel_sum__memory_aug_recurrent_mem_tr__glu_gated_reglu__prompt.s.ref').read().split('\n')
    head = [l for l in hdr if l.startswith(';') and '@launch' not in l and 'Override' not in l and 'grid=ceil' not in l]
    out = '\n'.join(head) + '\n'
    for n in order:
        g, b, lds = ks[n][2]
        out += f'; @launch kernel={n} grid=({g},1,1) block=({b},1,1) lds={lds}\n'
    out += '.amdgcn_target "amdgcn-amd-amdhsa--gfx950"\n.text\n'
    out += a.text()
    out += '.section .rodata,"a"\n'
    for n in order:
        out += '.p2align 6\n' + ks[n][1]
    return out

if __name__ == '__main__':

    SL = tuple(int(x) for x in os.environ.get('SL', '0,4,12,0').split(','))
    STAMP = bool(os.environ.get('STAMP'))
    s = build(SL, STAMP)
    open(os.environ.get('OUT', 'parallel_sum__memory_aug_recurrent_mem_tr__glu_gated_reglu__prompt.s'), 'w').write(s)
    print(len(s), 'bytes')
```

```python
from common import *
import os
from k_attn import softmax_block, xgroup_reduce, SCALE, attn_body
from k_gemm import gemm_body, divmod_const

SPIN_MAX = 1 << 18

def gen_chain(a, SL=(0,0,0,0), STAMP=False):
    name = 'chain_kernel'
    kernel_header(a, name)
    NWG = 256
    NWORK = NWG - 129
    MEMF = 32
    ACC1 = 52
    OACC = 32
    KXF = 88
    VXF = 136
    QF = 184
    KMF = 208
    VMF = 232
    SACC = 184
    SACC = 76
    OF = 184
    PF = 208
    PACC = 216
    TMP = 24
    WSL = int(os.environ.get('WSL', '32'))
    NP = int(os.environ.get('NP', '1'))
    PA = [184, 204, 224][:NP-1]
    PB = [44, 56, 68][:NP-1]
    PC = [64, 96, 128][:int(os.environ.get('NPC', '1'))-1]
    AW1 = 0
    AWO = 180
    LDS_PART = 0
    LDS_SHARE = 36864
    LDS_KVX = LDS_SHARE + 9216
    LDS_BYTES = LDS_KVX + 24576
    a(f"""
    s_cmp_ge_u32 s2, {NWG}
    s_cbranch_scc1 L_ch_done
    s_load_dwordx2 s[4:5], s[0:1], {KA_WS}
    s_load_dwordx2 s[6:7], s[0:1], {KA_WQ}
    s_load_dwordx2 s[8:9], s[0:1], {KA_WK}
    s_load_dwordx2 s[10:11], s[0:1], {KA_WV}
    s_load_dwordx2 s[12:13], s[0:1], {KA_WO}
    s_load_dwordx2 s[84:85], s[0:1], {KA_DBG}
    s_load_dwordx2 s[86:87], s[0:1], {KA_WG}
    s_load_dwordx2 s[88:89], s[0:1], {KA_WU}
    v_lshrrev_b32 v1, 6, v0
    v_and_b32 v2, 63, v0
    s_nop 0
    v_readfirstlane_b32 s40, v1        ; wave
    s_and_b32 s41, s2, 7
    s_lshl_b32 s41, s41, 2
    s_lshr_b32 s42, s2, 5
    s_add_u32 s41, s41, s42
    s_lshr_b32 s42, s2, 3
    s_and_b32 s42, s42, 3
    s_waitcnt lgkmcnt(0)
    """)
    a('s_and_b32 s43, s2, 7')
    a('s_lshl_b32 s43, s43, 16')
    a(f's_add_u32 s43, s43, {MEMR_OFF:#x}')
    a('s_add_u32 s16, s4, s43')
    a('s_addc_u32 s17, s5, 0')
    a(f's_mov_b32 s18, {4 * MEMR_STRIDE:#x}')
    a('s_mov_b32 s19, 0x20000')
    srd(a, 20, 4, 4 * QKVR_STRIDE, QKVR_OFF)
    srd(a, 24, 4, 4 * PR_STRIDE, PR_OFF)
    srd(a, 28, 4, NSEG * H * 6144, KVM_OFF)
    srd(a, 32, 4, S * HD * 2, KX_OFF)
    srd(a, 36, 4, S * HD * 2, VF_OFF)
    srd(a, 92, 4, 4096, CNT_OFF)
    a(f"""
    v_and_b32 v3, 15, v2               ; l&15
    v_lshrrev_b32 v4, 4, v2            ; g4
    v_and_b32 v5, 7, v2                ; l&7
    s_cmp_ge_u32 s2, 129
    s_cbranch_scc1 L_ch_worker
    s_cmp_eq_u32 s2, 128
    s_cbranch_scc1 L_ch_monitor
    """)
    a(f"""
    v_lshrrev_b32 v6, 1, v2            ; row 0..31
    v_and_b32 v7, 1, v2
    s_mul_i32 s43, s40, 160
    v_add_u32 v8, s43, v6
    s_mov_b32 s60, {HD*2}
    v_mul_lo_u32 v8, v8, s60
    v_lshl_add_u32 v8, v7, 4, v8
    s_mul_i32 s43, s40, 9216
    v_lshlrev_b32 v9, 4, v2
    v_add_u32 v9, s43, v9
    v_lshrrev_b32 v10, 2, v3           ; r
    v_and_b32 v11, 3, v2               ; c
    v_lshl_add_u32 v12, v4, 3, v10     ; 8g + r
    v_lshlrev_b32 v12, 5, v12
    v_lshl_add_u32 v12, v11, 3, v12
    v_add_u32 v12, s43, v12
    v_lshl_add_u32 v13, v4, 2, v10     ; 4g + r
    v_lshlrev_b32 v13, 5, v13
    v_lshl_add_u32 v13, v11, 3, v13
    v_add_u32 v13, s43, v13
    s_mov_b32 s46, {DM*HD*2:#x}
    s_mov_b32 s47, 0x20000
    """)
    a(f"""
    s_mul_i32 s50, s40, 3
    s_cmp_eq_u32 s40, 3
    s_cselect_b32 s50, 8, s50
    s_mul_i32 s48, s41, 192
    v_add_u32 v14, s48, v6
    v_mul_u32_u24 v14, {DM*2}, v14
    v_lshl_add_u32 v14, v7, 4, v14
    s_mov_b32 s52, s12
    s_mov_b32 s53, s13
    s_mov_b32 s54, {HD*DM*2:#x}
    s_mov_b32 s55, 0x20000
    """)
    batches = [[('w1', t, ks) for t in range(9)] for ks in range(5)]
    wo_items = [('wo', tt, ks2) for tt in range(3) for ks2 in range(6)]
    batches += [wo_items[:9], wo_items[9:]]
    def stg(b):
        return 32 + 36 * (b % 6)
    def issue(b):
        for i, (kind, x, y) in enumerate(batches[b]):
            r = stg(b) + 4 * i
            if kind == 'w1':
                a(f"""
                s_mul_i32 s48, s42, 9
                s_add_u32 s48, s48, {x}
                s_cmp_ge_u32 s48, 12
                s_cselect_b32 s44, s8, s6
                s_cselect_b32 s45, s9, s7
                s_cselect_b32 s49, 12, 0
                s_cmp_ge_u32 s48, 24
                s_cselect_b32 s44, s10, s44
                s_cselect_b32 s45, s11, s45
                s_cselect_b32 s49, 24, s49
                s_sub_u32 s48, s48, s49
                s_lshl_b32 s48, s48, 5             ; *32 bytes
                s_mul_i32 s49, s41, 384
                s_add_u32 s48, s48, s49
                s_add_u32 s48, s48, {y*32*HD*2:#x}
                buffer_load_dwordx4 v[{r}:{r+3}], v8, s[44:47], s48 offen
                """)
            else:
                a(f"""
                s_add_u32 s48, s50, {x}
                s_min_u32 s48, s48, 9
                s_lshl_b32 s48, s48, 5
                s_mul_i32 s49, s42, 320
                s_add_u32 s48, s48, s49
                s_add_u32 s48, s48, {y*32*DM*2}
                buffer_load_dwordx4 v[{r}:{r+3}], v14, s[52:55], s48 offen
                """)
    for b in range(6):
        issue(b)
    for b in range(7):
        G = stg(b)
        left = (5 - b) if b < 1 else (6 - b)
        a(f's_waitcnt vmcnt({9*max(left,0)})')
        for i in range(9):
            a(f'ds_write_b128 v9, v[{G+4*i}:{G+4*i+3}] offset:{i*1024}')
        a('s_waitcnt lgkmcnt(0)')
        for i, (kind, x, y) in enumerate(batches[b]):
            if kind == 'w1':
                a(f'ds_read_b64_tr_b16 v[{G+4*i}:{G+4*i+1}], v12 offset:{i*1024}')
                a(f'ds_read_b64_tr_b16 v[{G+4*i+2}:{G+4*i+3}], v12 offset:{i*1024+128}')
            else:
                a(f'ds_read_b64_tr_b16 v[{G+4*i}:{G+4*i+1}], v13 offset:{i*1024}')
                a(f'ds_read_b64_tr_b16 v[{G+4*i+2}:{G+4*i+3}], v13 offset:{i*1024+512}')
        a('s_waitcnt lgkmcnt(0)')
        for i, (kind, x, y) in enumerate(batches[b]):
            dst = AW1 + (x*5+y)*4 if kind == 'w1' else AWO + (x*6+y)*4
            for r in range(4):
                a(f'v_accvgpr_write_b32 a{dst+r}, v{G+4*i+r}')
        if b == 0:
            issue(6)
    a(f"""
    v_lshl_add_u32 v6, v4, 3, v5
    v_lshlrev_b32 v6, 4, v6
    v_mov_b32 v7, v6
    s_mul_i32 s43, s40, 2560
    v_add_u32 v6, s43, v6
    v_add_u32 v7, {LDS_SHARE}, v7
    v_mov_b32 v8, v9
    v_lshrrev_b32 v10, 4, v0           ; t
    v_and_b32 v11, 15, v0              ; i
    s_mul_i32 s43, s42, 9
    v_add_u32 v12, s43, v10            ; T global
    v_lshrrev_b32 v13, 3, v11
    v_lshlrev_b32 v13, 5, v13
    v_and_b32 v14, 7, v11
    v_add_u32 v13, v13, v14            ; T-form l1
    v_cmp_le_u32 vcc, 24, v12
    s_nop 1
    v_cndmask_b32 v13, v13, v11, vcc
    v_lshlrev_b32 v13, 4, v13
    v_lshl_add_u32 v9, v10, 10, v13
    s_mul_i32 s43, s41, 9216
    s_mul_i32 s48, s42, 2304
    s_add_u32 s43, s43, s48
    v_lshlrev_b32 v10, 4, v0
    v_add_u32 v10, s43, v10
    s_mul_i32 s43, s41, 6144
    s_add_u32 s43, s43, s48
    s_sub_u32 s43, s43, 3072
    v_lshlrev_b32 v11, 4, v0
    v_add_u32 v11, s43, v11
    v_cmp_gt_u32 vcc, 144, v0
    s_mov_b64 s[52:53], vcc
    v_cmp_le_u32 vcc, 12, v12
    s_and_b64 s[54:55], vcc, s[52:53]
    s_mul_i32 s43, s41, 9216
    s_mul_i32 s48, s40, 2304
    s_add_u32 s43, s43, s48
    v_lshlrev_b32 v12, 4, v2
    v_min_u32 v13, 15, v2
    v_lshlrev_b32 v13, 4, v13
    v_add_u32 v13, 2048, v13
    v_add_u32 v15, s48, v12
    v_add_u32 v15, {LDS_SHARE}, v15
    v_add_u32 v16, s48, v13
    v_add_u32 v16, {LDS_SHARE}, v16
    v_add_u32 v12, s43, v12
    v_add_u32 v13, s43, v13
    v_and_b32 v14, 1, v4
    v_lshlrev_b32 v14, 3, v14
    v_lshl_add_u32 v14, v3, 4, v14
    v_add_u32 v14, {LDS_SHARE+6144}, v14
    s_mul_i32 s43, s42, 20
    s_lshl_b32 s48, s50, 1
    s_add_u32 s43, s43, s48
    v_lshrrev_b32 v17, 1, v4
    v_add_u32 v17, s43, v17
    v_lshlrev_b32 v17, 13, v17
    v_and_b32 v18, 1, v4
    v_lshl_add_u32 v18, v18, 3, v5
    v_lshl_add_u32 v17, v18, 4, v17
    s_lshl_b32 s43, s41, 8
    v_add_u32 v17, s43, v17
    v_cmp_gt_u32 s[56:57], 8, v3
    v_cmp_gt_u32 s[58:59], 2, v4       ; g4<2 mask
    s_mov_b32 s60, 12288
    v_mul_lo_u32 v18, v3, s60
    s_mul_i32 s43, s41, 384
    v_add_u32 v18, s43, v18
    v_lshl_add_u32 v18, v4, 4, v18
    v_add_u32 v19, {16*12288:#x}, v18
    s_mul_i32 s43, s41, 12288
    v_lshlrev_b32 v20, 4, v2
    v_add_u32 v20, s43, v20
    v_add_u32 v21, 4096, v20
    v_add_u32 v22, 8192, v20
    s_lshr_b32 s43, s2, 3
    s_mul_i32 s43, s43, 5
    s_add_u32 s43, s43, s40
    s_lshl_b32 s48, s43, 13
    v_lshlrev_b32 v23, 4, v2
    v_add_u32 v23, s48, v23
    v_lshrrev_b32 v22, 3, v2
    v_and_b32 v22, 1, v22
    v_lshlrev_b32 v22, 3, v22
    v_lshl_add_u32 v22, v5, 4, v22
    s_lshl_b32 s48, s43, 7
    v_add_u32 v1, s48, v22
    s_mov_b32 s61, {SCALE!r}
    s_lshl_b32 s75, s41, 2
    s_add_u32 s75, s75, s42
    s_mov_b32 s62, 0                   ; step
    s_mov_b32 s65, 0
    """)
    a(f"""
    s_cmp_ge_u32 s40, 2
    s_cselect_b32 s44, s36, s32
    s_cselect_b32 s45, s37, s33
    s_mov_b32 s46, {S*HD*2:#x}
    s_mov_b32 s47, 0x20000
    s_cselect_b32 s48, 1024, 64
    s_mov_b32 s49, {384*1024}
    s_cmp_eq_u32 s40, 3
    s_cselect_b32 s63, 6144, 0
    s_cmp_eq_u32 s40, 1
    s_cselect_b64 vcc, -1, 0
    s_nop 1
    v_cndmask_b32 v18, v18, v19, vcc
    s_cmp_ge_u32 s40, 2
    s_cselect_b64 vcc, -1, 0
    s_nop 1
    v_cndmask_b32 v18, v18, v20, vcc
    s_mul_i32 s64, s40, 6144
    s_add_u32 s64, s64, {LDS_KVX}
    v_lshlrev_b32 v19, 4, v2
    v_add_u32 v19, {LDS_KVX}, v19
    """)
    def prefetch_kv():
        a('s_mov_b32 s66, s63')
        for i in range(6):
            a(f's_add_u32 m0, s64, {i*1024}')
            if i: a('s_add_u32 s66, s66, s48')
            else: a('s_nop 0')
            a('buffer_load_dwordx4 v18, s[44:47], s66 offen sc1 lds')
        a('s_add_u32 s63, s63, s49')
    def read_kv():
        for i in range(12):
            a(f'ds_read_b128 v[{KXF+4*i}:{KXF+4*i+3}], v19 offset:{i*1024}')
        for i in range(12):
            a(f'ds_read_b128 v[{VXF+4*i}:{VXF+4*i+3}], v19 offset:{(12+i)*1024}')
    def prefetch_k():
        for kt in range(2):
            for ks in range(6):
                r = KXF + (kt * 6 + ks) * 4
                a(f'buffer_load_dwordx4 v[{r}:{r+3}], v{18+kt}, s[32:35], s63 offen offset:{ks*64} sc1')
    def prefetch_v():
        for t in range(12):
            r = VXF + 4 * t
            a(f'buffer_load_dwordx4 v[{r}:{r+3}], v{20+t//4}, s[36:39], s64 offen offset:{(t%4)*1024} sc1')
    STAMP_OFF = WS_USED
    if STAMP:
        srd(a, 76, 4, 1 << 20, STAMP_OFF)
        a('s_lshl_b32 s43, s2, 2')
        a('s_add_u32 s43, s43, s40')
        a('s_lshl_b32 s43, s43, 7')
        a('v_mov_b32 v21, s43')
    def stamp(idx, step=32):
        if not STAMP: return
        lbl = f'L_ch_st{idx}'
        a(f's_cmp_lg_u32 s62, {step}')
        a(f's_cbranch_scc1 {lbl}')
        a('s_memrealtime s[80:81]')
        a('s_waitcnt lgkmcnt(0)')
        a('v_mov_b32 v30, s80')
        a('v_mov_b32 v31, s81')
        a('s_mov_b64 s[82:83], exec')
        a('s_mov_b64 exec, 1')
        a(f'buffer_store_dwordx2 v[30:31], v21, s[76:79], 0 offen offset:{idx*8}')
        a('s_mov_b64 exec, s[82:83]')
        a.label(lbl)
    def sleep(n):
        if n: a(f's_sleep {n}')
    def segsig(tag):
        a(f"""
        s_cmp_lg_u32 s40, 0
        s_cbranch_scc1 L_ch_nosig{tag}
        s_lshl_b32 s66, s75, 2
        s_add_u32 s66, s66, 256
        v_mov_b32 v24, s66
        s_add_u32 s66, s62, 1
        v_mov_b32 v25, s66
        s_mov_b64 exec, 1
        buffer_store_dword v25, v24, s[92:95], 0 offen sc1
        s_mov_b64 exec, -1
        """)
        a.label(f'L_ch_nosig{tag}')
    def wait_kv(tag, seg_sreg):
        a(f"""
        s_lshr_b32 s66, s{seg_sreg}, 3
        s_lshr_b32 s67, s{seg_sreg}, 1
        s_add_u32 s67, s67, 48
        s_cmp_lt_u32 s{seg_sreg}, 8
        s_cselect_b32 s66, s67, s66
        s_lshl_b32 s66, s66, 2
        v_mov_b32 v24, s66
        s_mov_b32 s74, 0
        """)
        a.label(f'L_ch_kv{tag}')
        a(f"""
        buffer_load_dword v25, v24, s[92:95], 0 offen sc1
        s_waitcnt vmcnt(0)
        v_readfirstlane_b32 s66, v25
        s_add_u32 s74, s74, 1
        s_cmp_ge_u32 s74, {SPIN_MAX*4}
        s_cbranch_scc1 L_ch_done
        s_cmp_ge_u32 s66, 48
        s_cbranch_scc1 L_ch_kvok{tag}
        s_sleep 8
        s_branch L_ch_kv{tag}
        """)
        a.label(f'L_ch_kvok{tag}')
    XF = int(os.environ.get('XF', '1'))
    a('s_mov_b32 s51, 0')
    if XF:
        a(f"""
        s_getreg_b32 s66, hwreg(HW_REG_XCC_ID)
        s_add_u32 s66, s66, 1
        v_mov_b32 v25, s66
        s_and_b32 s67, s2, 7
        s_lshl_b32 s67, s67, 6
        s_add_u32 s67, s67, 1024
        s_lshr_b32 s68, s2, 3
        s_lshl_b32 s68, s68, 2
        s_add_u32 s68, s68, s67
        v_mov_b32 v24, s68
        s_mov_b64 exec, 1
        buffer_store_dword v25, v24, s[92:95], 0 offen sc1
        s_mov_b64 exec, -1
        v_and_b32 v24, 15, v2
        v_lshl_add_u32 v24, v24, 2, s67
        s_mov_b32 s74, 0
        """)
        a.label('L_ch_xw')
        a(f"""
        buffer_load_dword v25, v24, s[92:95], 0 offen sc1
        s_waitcnt vmcnt(0)
        v_cmp_eq_u32 vcc, 0, v25
        s_add_u32 s74, s74, 1
        s_cmp_ge_u32 s74, {SPIN_MAX}
        s_cbranch_scc1 L_ch_done
        s_nop 1
        s_cbranch_vccnz L_ch_xw
        v_cmp_ne_u32 vcc, s66, v25
        s_nop 4
        s_cmp_eq_u64 vcc, 0
        s_cselect_b32 s51, 1, 0
        """)
    wait_kv(0, 62)
    prefetch_kv()
    a('s_barrier')
    a.label('L_ch_step')
    a(f"""
    s_and_b32 s66, s62, 3
    s_lshl_b32 s67, s66, 14
    s_mul_i32 s68, s66, {QKVR_STRIDE}
    s_mul_i32 s69, s66, {PR_STRIDE}
    s_add_u32 s66, s62, 2
    s_and_b32 s66, s66, 3
    s_mul_i32 s70, s66, {QKVR_STRIDE}
    s_mul_i32 s71, s66, {PR_STRIDE}
    s_add_u32 s66, s62, 1
    s_and_b32 s66, s66, 3
    s_lshl_b32 s72, s66, 14
    s_add_u32 s66, s62, 3
    s_and_b32 s66, s66, 3
    s_lshl_b32 s73, s66, 14
    s_mov_b32 s74, 0
    """)
    if SL[3]:
        a('s_cmp_eq_u32 s62, 0')
        a('s_cbranch_scc1 L_ch_pollA')
        sleep(SL[3])
    a.label('L_ch_pollA')
    def anysent(regs, t):
        a(f'v_max3_u32 v{t}, v{regs[0]}, v{regs[1]}, v{regs[2]}')
        i = 3
        while i < len(regs):
            if i + 1 < len(regs):
                a(f'v_max3_u32 v{t}, v{t}, v{regs[i]}, v{regs[i+1]}'); i += 2
            else:
                a(f'v_max_u32 v{t}, v{t}, v{regs[i]}'); i += 1
        a(f'v_cmp_eq_u32 vcc, -1, v{t}')
    def spin(lbl):
        a(f"""
        s_add_u32 s74, s74, 1
        s_cmp_ge_u32 s74, {SPIN_MAX}
        s_cbranch_scc1 L_ch_done
        s_nop 1
        s_cbranch_vccnz {lbl}
        """)
    def ppoll(tag, loads, base0, alts, n, nl, t):
        sets = [base0] + list(alts)
        K = len(sets)
        for k in range(K - 1):
            loads(sets[k])
        a.label(f'L_ch_poll{tag}')
        for k in range(K):
            cur = sets[k]; nxt = sets[(k + K - 1) % K]
            loads(nxt)
            a(f's_waitcnt vmcnt({nl*(K-1)})')
            anysent(list(range(cur, cur + n)), t)
            a('s_nop 1')
            a(f's_cbranch_vccz L_ch_ok{tag}{k}')
        a(f"""
        s_add_u32 s74, s74, 1
        s_cmp_ge_u32 s74, {SPIN_MAX}
        s_cbranch_scc1 L_ch_done
        s_branch L_ch_poll{tag}
        """)
        for k in range(K - 1, 0, -1):
            a.label(f'L_ch_ok{tag}{k}')
            for r in range(n):
                a(f'v_mov_b32 v{base0+r}, v{sets[k]+r}')
            a(f's_branch L_ch_ok{tag}0')
        a.label(f'L_ch_ok{tag}0')
    def ldA(b):
        for ks in range(5):
            a(f'buffer_load_dwordx4 v[{b+4*ks}:{b+4*ks+3}], v6, s[16:19], s67 offen offset:{ks*512} sc1')
    ppoll('A_', ldA, MEMF, PA, 20, 5, TMP)
    stamp(6, 33); stamp(0)
    a('s_cmp_eq_u32 s42, 2')
    a('s_cbranch_scc1 L_ch_p1_mix')
    a('s_cmp_eq_u32 s42, 3')
    a('s_cbranch_scc1 L_ch_p1_n')
    def p1(nfrom):
        for ks in range(5):
            for t in range(9):
                acc = ACC1 + 4 * t
                w = f'a[{AW1+(t*5+ks)*4}:{AW1+(t*5+ks)*4+3}]'
                m = f'v[{MEMF+4*ks}:{MEMF+4*ks+3}]'
                c = '0' if ks == 0 else f'v[{acc}:{acc+3}]'
                if t < nfrom:
                    a(f'v_mfma_f32_16x16x32_bf16 v[{acc}:{acc+3}], {w}, {m}, {c}')
                else:
                    a(f'v_mfma_f32_16x16x32_bf16 v[{acc}:{acc+3}], {m}, {w}, {c}')
    p1(9)
    a('s_branch L_ch_p1_done')
    a.label('L_ch_p1_mix')
    p1(6)
    a('s_branch L_ch_p1_done')
    a.label('L_ch_p1_n')
    p1(0)
    a.label('L_ch_p1_done')
    stamp(14)
    a('s_nop 7')
    a('s_nop 1')
    for t in range(9):
        a(f'ds_write_b128 v8, v[{ACC1+4*t}:{ACC1+4*t+3}] offset:{t*1024}')
    a('s_waitcnt vmcnt(0) lgkmcnt(0)' if NP > 1 else 's_waitcnt lgkmcnt(0)')
    a('s_barrier')
    stamp(15)
    a('s_mov_b64 exec, s[52:53]')
    a('s_cbranch_execz L_ch_nopub')
    R = MEMF
    for w in range(4):
        a(f'ds_read_b128 v[{R+8*w}:{R+8*w+3}], v9 offset:{w*9216}')
        a(f'ds_read_b128 v[{R+8*w+4}:{R+8*w+7}], v9 offset:{w*9216+256}')
    a('s_waitcnt lgkmcnt(0)')
    for j in range(8):
        a(f'v_add_f32 v{R+j}, v{R+j}, v{R+8+j}')
        a(f'v_add_f32 v{R+16+j}, v{R+16+j}, v{R+24+j}')
        a(f'v_add_f32 v{R+j}, v{R+j}, v{R+16+j}')
    for j in range(4):
        a(f'v_cvt_pk_bf16_f32 v{R+8+j}, v{R+2*j}, v{R+2*j+1}')
        a(f'v_min_u32 v{R+8+j}, 0xfffffffe, v{R+8+j}')
    a('s_cmp_eq_u32 s51, 1')
    a('s_cbranch_scc1 L_ch_pubf')
    a(f'buffer_store_dwordx4 v[{R+8}:{R+11}], v10, s[20:23], s68 offen sc1')
    a('s_branch L_ch_pubd')
    a.label('L_ch_pubf')
    a(f'buffer_store_dwordx4 v[{R+8}:{R+11}], v10, s[20:23], s68 offen')
    a.label('L_ch_pubd')
    for r in range(4):
        a(f'v_accvgpr_write_b32 a{252+r}, v{R+8+r}')
    a.label('L_ch_nopub')
    a('s_mov_b64 exec, -1')
    stamp(1)
    a(f's_cmp_eq_u32 s62, {NSEG-1}')
    a('s_cbranch_scc1 L_ch_last')
    read_kv()
    a('s_mov_b32 s74, 0')
    sleep(SL[1])
    def ldB(b):
        a(f'buffer_load_dwordx4 v[{b}:{b+3}], v12, s[20:23], s68 offen sc1')
        a(f'buffer_load_dwordx4 v[{b+4}:{b+7}], v12, s[20:23], s68 offen offset:1024 sc1')
        a(f'buffer_load_dwordx4 v[{b+8}:{b+11}], v13, s[20:23], s68 offen sc1')
    ppoll('B_', ldB, R, PB, 12, 3, TMP)
    stamp(2)
    a(f'ds_write_b128 v15, v[{R}:{R+3}]')
    a(f'ds_write_b128 v15, v[{R+4}:{R+7}] offset:1024')
    a(f'ds_write_b128 v16, v[{R+8}:{R+11}]')
    a('s_waitcnt lgkmcnt(0)')
    a('s_barrier')
    stamp(7)
    a('s_add_u32 s90, s62, 1')
    a('s_cmp_lt_u32 s90, 8')
    a('s_cselect_b32 s67, 1, 7')
    a('s_and_b32 s66, s90, s67')
    a('s_cmp_lg_u32 s66, 0')
    a('s_cbranch_scc1 L_ch_kvok1')
    wait_kv(1, 90)
    prefetch_kv()
    for ks in range(6):
        a(f'ds_read_b128 v[{QF+4*ks}:{QF+4*ks+3}], v7 offset:{ks*512}')
        a(f'ds_read_b128 v[{KMF+4*ks}:{KMF+4*ks+3}], v7 offset:{3072+ks*512}')
    a('s_waitcnt lgkmcnt(0)')
    for t in range(12):
        a(f'ds_read_b64 v[{VMF+2*t}:{VMF+2*t+1}], v14 offset:{t*256}')
    for ks in range(6):
        q = f'v[{QF+4*ks}:{QF+4*ks+3}]'
        c = (lambda b: '0') if ks == 0 else (lambda b: f'v[{b}:{b+3}]')
        a(f'v_mfma_f32_16x16x32_bf16 v[{SACC}:{SACC+3}], v[{KMF+4*ks}:{KMF+4*ks+3}], {q}, {c(SACC)}')
        a(f'v_mfma_f32_16x16x32_bf16 v[{SACC+4}:{SACC+7}], v[{KXF+4*ks}:{KXF+4*ks+3}], {q}, {c(SACC+4)}')
        a(f'v_mfma_f32_16x16x32_bf16 v[{SACC+8}:{SACC+11}], v[{KXF+24+4*ks}:{KXF+24+4*ks+3}], {q}, {c(SACC+8)}')
    a('v_mov_b32 v26, 0xce6e6b28')
    a('s_nop 7')
    a('s_nop 1')
    stamp(8)
    stamp(9)
    softmax_block(a, list(range(SACC, SACC + 12)), {SACC + r: 's[58:59]' for r in range(4)}, 61, 24, 25, 26)
    a(f'v_cvt_pk_bf16_f32 v{PF}, v{SACC+4}, v{SACC+5}')
    a(f'v_cvt_pk_bf16_f32 v{PF+1}, v{SACC+6}, v{SACC+7}')
    a(f'v_cvt_pk_bf16_f32 v{PF+2}, v{SACC+8}, v{SACC+9}')
    a(f'v_cvt_pk_bf16_f32 v{PF+3}, v{SACC+10}, v{SACC+11}')
    a(f'v_cvt_pk_bf16_f32 v{PF+4}, v{SACC}, v{SACC+1}')
    a(f'v_cvt_pk_bf16_f32 v{PF+5}, v{SACC+2}, v{SACC+3}')
    stamp(10)
    a('s_waitcnt vmcnt(0) lgkmcnt(0)' if NP > 1 else 's_waitcnt lgkmcnt(0)')
    a('s_nop 0')
    for t in range(12):
        o = OACC + 4 * t
        a(f'v_mfma_f32_16x16x32_bf16 v[{o}:{o+3}], v[{VXF+4*t}:{VXF+4*t+3}], v[{PF}:{PF+3}], 0')
    for t in range(12):
        o = OACC + 4 * t
        a(f'v_mfma_f32_16x16x16_bf16 v[{o}:{o+3}], v[{VMF+2*t}:{VMF+2*t+1}], v[{PF+4}:{PF+5}], v[{o}:{o+3}]')
    a('s_nop 7')
    a('s_nop 1')
    stamp(11)
    stamp(12)
    for t in range(12):
        o = OACC + 4 * t
        a(f'v_cvt_pk_bf16_f32 v{OF+2*t}, v{o}, v{o+1}')
        a(f'v_cvt_pk_bf16_f32 v{OF+2*t+1}, v{o+2}, v{o+3}')
    a('s_nop 1')
    for ks2 in range(6):
        for tt in range(3):
            p = PACC + 4 * tt
            w = AWO + (tt * 6 + ks2) * 4
            c = '0' if ks2 == 0 else f'v[{p}:{p+3}]'
            a(f'v_mfma_f32_16x16x32_bf16 v[{p}:{p+3}], a[{w}:{w+3}], v[{OF+4*ks2}:{OF+4*ks2+3}], {c}')
    a('s_nop 7')
    a('s_nop 1')
    stamp(13)
    for r in range(PACC, PACC + 12):
        a(f'v_min_u32 v{r}, 0xfffffffe, v{r}')
    for r in range(28, 32):
        a(f'v_mov_b32 v{r}, -1')
    a('s_mov_b64 exec, s[56:57]')
    a(f'buffer_store_dwordx4 v[{PACC}:{PACC+3}], v17, s[24:27], s69 offen sc1')
    a('s_add_u32 s66, s69, 16384')
    a(f'buffer_store_dwordx4 v[{PACC+4}:{PACC+7}], v17, s[24:27], s66 offen sc1')
    a('s_cmp_ge_u32 s40, 2')
    a('s_cbranch_scc1 L_ch_no3')
    a('s_add_u32 s66, s69, 32768')
    a(f'buffer_store_dwordx4 v[{PACC+8}:{PACC+11}], v17, s[24:27], s66 offen sc1')
    a('s_add_u32 s66, s71, 32768')
    a('buffer_store_dwordx4 v[28:31], v17, s[24:27], s66 offen sc1')
    a.label('L_ch_no3')
    a('buffer_store_dwordx4 v[28:31], v17, s[24:27], s71 offen sc1')
    a('s_add_u32 s66, s71, 16384')
    a('buffer_store_dwordx4 v[28:31], v17, s[24:27], s66 offen sc1')
    a('s_mov_b64 exec, s[52:53]')
    a('s_cbranch_execz L_ch_noclr')
    a('s_cmp_eq_u32 s51, 1')
    a('s_cbranch_scc1 L_ch_clrf')
    a('buffer_store_dwordx4 v[28:31], v10, s[20:23], s70 offen sc1')
    a('s_branch L_ch_noclr')
    a.label('L_ch_clrf')
    a('buffer_store_dwordx4 v[28:31], v10, s[20:23], s70 offen')
    a.label('L_ch_noclr')
    a('s_mov_b64 exec, -1')
    stamp(3)
    a('s_mov_b64 exec, s[54:55]')
    a('s_cbranch_execz L_ch_nokvma')
    a('buffer_store_dwordx4 a[252:255], v11, s[28:31], s65 offen sc1')
    a.label('L_ch_nokvma')
    a('s_mov_b64 exec, -1')
    a('s_mov_b32 s74, 0')
    sleep(SL[2])
    a('v_add_u32 v27, 4096, v23')
    a('s_cmp_eq_u32 s40, 0')
    a('s_cbranch_scc1 L_ch_red2')
    def red_loads(base, extra):
        for i in range(8):
            a(f'buffer_load_dwordx4 v[{base+4*i}:{base+4*i+3}], v{23 if i<4 else 27}, s[24:27], {extra} offen offset:{(i%4)*1024} sc1')
    def red_sum(base, F):
        for k in range(4):
            for j in range(4):
                a(f'v_add_f32 v{F+4*k+j}, v{base+4*k+j}, v{base+4*(k+4)+j}')
        for i in (2, 1):
            for k in range(i):
                for j in range(4):
                    a(f'v_add_f32 v{F+4*k+j}, v{F+4*k+j}, v{F+4*(k+i)+j}')
        for sw in ('v_permlane32_swap_b32', 'v_permlane16_swap_b32'):
            for j in range(4):
                a(f'v_mov_b32 v{F+8+j}, v{F+j}')
            a('s_nop 0')
            for j in range(4):
                a(f'{sw} v{F+j}, v{F+8+j}')
            a('s_nop 1')
            for j in range(4):
                a(f'v_add_f32 v{F+j}, v{F+j}, v{F+8+j}')
        a(f'v_cvt_pk_bf16_f32 v{F+4}, v{F}, v{F+1}')
        a(f'v_cvt_pk_bf16_f32 v{F+5}, v{F+2}, v{F+3}')
        a(f'v_min_u32 v{F+4}, 0xfffffffe, v{F+4}')
        a(f'v_min_u32 v{F+5}, 0xfffffffe, v{F+5}')
    def red_pub(F, off, tag):
        a('s_mov_b64 exec, 0xffff')
        a('s_cmp_eq_u32 s51, 1')
        a(f's_cbranch_scc1 L_ch_rpf{tag}')
        a(f'buffer_store_dwordx2 v[{F+4}:{F+5}], v1, s[16:19], s72 offen offset:{off} sc1')
        a(f'buffer_store_dwordx2 v[28:29], v1, s[16:19], s73 offen offset:{off} sc1')
        a(f's_branch L_ch_rpd{tag}')
        a.label(f'L_ch_rpf{tag}')
        a(f'buffer_store_dwordx2 v[{F+4}:{F+5}], v1, s[16:19], s72 offen offset:{off}')
        a(f'buffer_store_dwordx2 v[28:29], v1, s[16:19], s73 offen offset:{off}')
        a.label(f'L_ch_rpd{tag}')
        a('s_mov_b64 exec, -1')
    a.label('L_ch_pollC1')
    red_loads(32, 's69')
    a('s_waitcnt vmcnt(0)')
    anysent(list(range(32, 64)), TMP + 1)
    spin('L_ch_pollC1')
    stamp(4)
    red_sum(32, 184)
    red_pub(184, 0, 'a')
    a('s_branch L_ch_next')
    a.label('L_ch_red2')
    a('s_add_u32 s66, s69, 32768')
    a.label('L_ch_pollC2')
    red_loads(32, 's69')
    red_loads(64, 's66')
    a('s_waitcnt vmcnt(0)')
    anysent(list(range(32, 96)), TMP + 1)
    spin('L_ch_pollC2')
    pairs = [(32, 184), (64, 200)]
    for k in range(4):
        for j in range(4):
            for (b, F) in pairs:
                a(f'v_add_f32 v{F+4*k+j}, v{b+4*k+j}, v{b+4*(k+4)+j}')
    for i in (2, 1):
        for k in range(i):
            for j in range(4):
                for (b, F) in pairs:
                    a(f'v_add_f32 v{F+4*k+j}, v{F+4*k+j}, v{F+4*(k+i)+j}')
    regs8 = [F + j for (b, F) in pairs for j in range(4)]
    tmps8 = [F + 8 + j for (b, F) in pairs for j in range(4)]
    for sw in ('v_permlane32_swap_b32', 'v_permlane16_swap_b32'):
        for x, t in zip(regs8, tmps8):
            a(f'v_mov_b32 v{t}, v{x}')
        for x, t in zip(regs8, tmps8):
            a(f'{sw} v{x}, v{t}')
        a('s_nop 0')
        for x, t in zip(regs8, tmps8):
            a(f'v_add_f32 v{x}, v{x}, v{t}')
    for (b, F) in pairs:
        a(f'v_cvt_pk_bf16_f32 v{F+4}, v{F}, v{F+1}')
        a(f'v_cvt_pk_bf16_f32 v{F+5}, v{F+2}, v{F+3}')
        a(f'v_min_u32 v{F+4}, 0xfffffffe, v{F+4}')
        a(f'v_min_u32 v{F+5}, 0xfffffffe, v{F+5}')
    red_pub(184, 0, 'b')
    red_pub(200, 512, 'c')
    a.label('L_ch_next')
    stamp(5)
    a(f"""
    s_add_u32 s62, s62, 1
    s_add_u32 s65, s65, {32*6144}
    s_branch L_ch_step
    """)
    a.label('L_ch_last')
    a('s_mov_b64 exec, s[54:55]')
    a('s_cbranch_execz L_ch_nokvmb')
    a('buffer_store_dwordx4 a[252:255], v11, s[28:31], s65 offen sc1')
    a.label('L_ch_nokvmb')
    a('s_mov_b64 exec, -1')
    a('s_waitcnt vmcnt(0)')
    a('s_barrier')
    segsig('b')
    a('s_branch L_ch_done')
    a.label('L_ch_worker')
    base = dict(BM=256, BN=256, WR=2, WC=2, a_src=('ws', XN_OFF, S*DM*2), lda=DM, nk=DM//32, agpr=True, tiles=(8, 24, 1))
    cK = dict(base, name='wk', w_srcs=[KA_WK], ldw=HD, w_bytes=DM*HD*2, form='T', epi='ffn2', ldo=HD, out_off=KX_OFF, out_bytes=S*HD*2, sc1=True)
    cV = dict(base, name='wv', w_srcs=[KA_WV], ldw=HD, w_bytes=DM*HD*2, form='N', epi='v', sc1=True)
    cQ = dict(base, name='wq', w_srcs=[KA_WQ], ldw=HD, w_bytes=DM*HD*2, form='T', epi='ffn2', ldo=HD, out_off=QX_OFF, out_bytes=S*HD*2)
    cF = dict(base, name='wf', nb=2, w_srcs=[KA_WG, KA_WU], ldw=FF, w_bytes=DM*FF*2, form='T', epi='ffn1', ldo=FF, out_off=H_OFF, out_bytes=S*FF*2, tiles=(8, 12, 1))
    cQ['sc1'] = True; cF['sc1'] = True
    cG = dict(name='wg', BM=128, BN=128, WR=2, WC=2, a_src=('ws', H_OFF, S*FF*2), lda=FF, nk=FF//32, a_sc1=True,
              w_srcs=[KA_WD], ldw=DM, w_bytes=FF*DM*2, tiles=(16, 5, 1), form='T', epi='ffn2', ldo=DM, out_off=BO_OFF, out_bytes=S*DM*2, nst=8)
    cO = dict(name='wo', BM=128, BN=128, WR=2, WC=2, a_src=('ws', O_OFF, S*HD*2), lda=HD, nk=HD//KSP//32, ksplit_len=HD//KSP, a_sc1=True,
              w_srcs=[KA_WO], ldw=DM, w_bytes=HD*DM*2, tiles=(16, 5, KSP), form='T', epi='part', ldo=DM, nst=8)
    a(f"""
    s_load_dwordx2 s[76:77], s[0:1], {KA_WD}
    s_mov_b32 s78, s12
    s_mov_b32 s79, s13                 ; Wo
    s_waitcnt lgkmcnt(0)
    s_mov_b32 s44, s40
    s_mov_b32 s80, s40
    s_mov_b32 s96, s6
    s_mov_b32 s97, s7                  ; Wq
    s_mov_b32 s98, s8
    s_mov_b32 s99, s9                  ; Wk
    s_mov_b32 s100, s10
    s_mov_b32 s101, s11                ; Wv
    s_sub_u32 s91, s2, 129
    s_mov_b32 s42, 0
    """)
    lds_w = 0
    cKs = dict(cK, name='wks', BM=64, tiles=(32, 24, 1))
    cVs = dict(cV, name='wvs', BM=64, tiles=(32, 24, 1))
    a.label('L_w_s')
    a('s_cmp_ge_u32 s91, 192')
    a('s_cbranch_scc1 L_w_kv0')
    divmod_const(a, 91, 41, 40, 48)
    a('s_cmp_ge_u32 s40, 24')
    a('s_cbranch_scc1 L_w_sv')
    a('s_mov_b32 s6, s98'); a('s_mov_b32 s7, s99')
    gemm_body(a, cKs, 'L_wks')
    a('s_branch L_w_ssig')
    a.label('L_w_sv')
    a('s_sub_u32 s40, s40, 24')
    a('s_mov_b32 s6, s100'); a('s_mov_b32 s7, s101')
    gemm_body(a, cVs, 'L_wvs')
    a.label('L_w_ssig')
    a(f"""
    s_waitcnt vmcnt(0)
    s_barrier
    s_cmp_lg_u32 s44, 0
    s_cbranch_scc1 L_w_snosig
    s_lshl_b32 s66, s41, 2
    s_add_u32 s66, s66, 192
    v_mov_b32 v24, s66
    v_mov_b32 v25, 1
    s_mov_b64 exec, 1
    buffer_atomic_add v25, v24, s[92:95], 0 offen sc1
    s_mov_b64 exec, -1
    """)
    a.label('L_w_snosig')
    a(f's_add_u32 s91, s91, {NWORK}')
    a('s_branch L_w_s')
    a.label('L_w_kv0')
    a('s_sub_u32 s91, s91, 192')
    a.label('L_w_kv')
    a('s_cmp_ge_u32 s91, 336')
    a('s_cbranch_scc1 L_w_q0')
    divmod_const(a, 91, 41, 40, 48)
    a('s_add_u32 s41, s41, 1')
    a('s_cmp_ge_u32 s40, 24')
    a('s_cbranch_scc1 L_w_v')
    a('s_mov_b32 s6, s98'); a('s_mov_b32 s7, s99')
    _, lds_w = gemm_body(a, cK, 'L_wk')
    a('s_branch L_w_kvsig')
    a.label('L_w_v')
    a('s_sub_u32 s40, s40, 24')
    a('s_mov_b32 s6, s100'); a('s_mov_b32 s7, s101')
    gemm_body(a, cV, 'L_wv')
    a.label('L_w_kvsig')
    a(f"""
    s_waitcnt vmcnt(0)
    s_barrier
    s_cmp_lg_u32 s44, 0
    s_cbranch_scc1 L_w_nosig
    s_lshl_b32 s66, s41, 2
    v_mov_b32 v24, s66
    v_mov_b32 v25, 1
    s_mov_b64 exec, 1
    buffer_atomic_add v25, v24, s[92:95], 0 offen sc1
    s_mov_b64 exec, -1
    """)
    a.label('L_w_nosig')
    a(f's_add_u32 s91, s91, {NWORK}')
    a('s_branch L_w_kv')
    def wsig(idx_sreg, base, tag):
        a(f"""
        s_waitcnt vmcnt(0)
        s_barrier
        s_cmp_lg_u32 s44, 0
        s_cbranch_scc1 L_w_ns{tag}
        s_lshl_b32 s66, s{idx_sreg}, 2
        s_add_u32 s66, s66, {base*4}
        v_mov_b32 v24, s66
        v_mov_b32 v25, 1
        s_mov_b64 exec, 1
        buffer_atomic_add v25, v24, s[92:95], 0 offen sc1
        s_mov_b64 exec, -1
        """)
        a.label(f'L_w_ns{tag}')
    def wwait(idx_sreg, base, target, tag):
        a(f"""
        s_cmp_lg_u32 s80, 0
        s_cbranch_scc1 L_w_ok{tag}
        s_lshl_b32 s66, s{idx_sreg}, 2
        s_add_u32 s66, s66, {base*4}
        v_mov_b32 v24, s66
        s_mov_b32 s74, 0
        """)
        a.label(f'L_w_wt{tag}')
        a(f"""
        buffer_load_dword v25, v24, s[92:95], 0 offen sc1
        s_waitcnt vmcnt(0)
        v_readfirstlane_b32 s66, v25
        s_add_u32 s74, s74, 1
        s_cmp_ge_u32 s74, {SPIN_MAX*4}
        s_cbranch_scc1 L_ch_done
        s_cmp_ge_u32 s66, {target}
        s_cbranch_scc1 L_w_ok{tag}
        s_sleep {WSL}
        s_branch L_w_wt{tag}
        """)
        a.label(f'L_w_ok{tag}')
        a('s_barrier')
    a.label('L_w_q0')
    a('s_sub_u32 s91, s91, 336')
    a.label('L_w_q')
    a('s_cmp_ge_u32 s91, 192')
    a('s_cbranch_scc1 L_w_f0')
    divmod_const(a, 91, 41, 40, 24)
    a('s_mov_b32 s6, s96'); a('s_mov_b32 s7, s97')
    gemm_body(a, cQ, 'L_wq')
    wsig(41, 8, 'q')
    a(f's_add_u32 s91, s91, {NWORK}')
    a('s_branch L_w_q')
    a.label('L_w_f0')
    a('s_sub_u32 s91, s91, 192')
    a.label('L_w_f')
    a('s_cmp_ge_u32 s91, 96')
    a('s_cbranch_scc1 L_w_g0')
    divmod_const(a, 91, 41, 40, 12)
    a('s_mov_b32 s6, s86'); a('s_mov_b32 s7, s87')
    a('s_mov_b32 s8, s88'); a('s_mov_b32 s9, s89')
    gemm_body(a, cF, 'L_wf')
    wsig(41, 16, 'f')
    a(f's_add_u32 s91, s91, {NWORK}')
    a('s_branch L_w_f')
    a.label('L_w_g0')
    a('s_sub_u32 s91, s91, 96')
    a.label('L_w_g')
    a('s_cmp_ge_u32 s91, 80')
    a('s_cbranch_scc1 L_w_a0')
    divmod_const(a, 91, 41, 40, 5)
    a('s_lshr_b32 s90, s41, 1')
    wwait(90, 16, 12, 'g')
    a('s_mov_b32 s6, s76'); a('s_mov_b32 s7, s77')
    a('s_mov_b32 s42, 0')
    gemm_body(a, cG, 'L_wg')
    a('s_barrier')
    a(f's_add_u32 s91, s91, {NWORK}')
    a('s_branch L_w_g')
    INK = os.environ.get('INK', 'all')
    a.label('L_w_a0')
    if INK == 'none':
        a('s_branch L_ch_done')
    a('s_sub_u32 s91, s91, 80')
    a.label('L_w_a')
    a(f's_cmp_ge_u32 s91, {16*(32+5*KSP)}')
    a('s_cbranch_scc1 L_ch_done')
    divmod_const(a, 91, 82, 83, 32+5*KSP)
    a('s_cmp_ge_u32 s83, 32')
    a('s_cbranch_scc1 L_w_o')
    a("""
    s_lshr_b32 s41, s83, 3
    s_lshl_b32 s90, s82, 2
    s_add_u32 s41, s41, s90            ; seg
    s_and_b32 s42, s83, 7
    s_lshl_b32 s42, s42, 2
    s_add_u32 s42, s42, s44            ; head
    s_lshr_b32 s90, s82, 1
    """)
    wwait(90, 8, 24, 'aq')
    a(f"""
    s_cmp_lg_u32 s80, 0
    s_cbranch_scc1 L_w_okas
    v_mov_b32 v24, 120
    s_mov_b32 s74, 0
    """)
    a.label('L_w_wtas')
    a(f"""
    buffer_load_dword v25, v24, s[92:95], 0 offen sc1
    s_waitcnt vmcnt(0)
    v_readfirstlane_b32 s66, v25
    s_add_u32 s74, s74, 1
    s_cmp_ge_u32 s74, {SPIN_MAX*4}
    s_cbranch_scc1 L_ch_done
    s_cmp_gt_u32 s66, s41
    s_cbranch_scc1 L_w_okas
    s_sleep {WSL}
    s_branch L_w_wtas
    """)
    a.label('L_w_okas')
    a('s_barrier')
    attn_body(a, ' sc1')
    a('s_mov_b32 s44, s80')
    wsig(82, 32, 'a')
    a(f's_add_u32 s91, s91, {NWORK}')
    a('s_branch L_w_a')
    a.label('L_w_o')
    if INK == 'attn':
        a(f's_add_u32 s91, s91, {NWORK}')
        a('s_branch L_w_a')
    a('s_sub_u32 s83, s83, 32')
    divmod_const(a, 83, 42, 40, 5)
    a('s_mov_b32 s41, s82')
    wwait(82, 32, 32, 'o')
    a('s_mov_b32 s6, s78'); a('s_mov_b32 s7, s79')
    gemm_body(a, cO, 'L_wo')
    a('s_barrier')
    a(f's_add_u32 s91, s91, {NWORK}')
    a('s_branch L_w_a')
    LDS_BYTES = max(LDS_BYTES, lds_w, 8*16384)
    a.label('L_ch_monitor')
    a(f"""
    s_cmp_lg_u32 s40, 0
    s_cbranch_scc1 L_ch_done
    v_lshlrev_b32 v6, 4, v2
    v_add_u32 v7, 4096, v6
    v_mov_b32 v24, 120
    s_mov_b32 s62, 1
    """)
    a.label('L_ch_mstep')
    a(f"""
    s_sub_u32 s66, s62, 1
    s_and_b32 s66, s66, 3
    s_mul_i32 s67, s66, {PR_STRIDE}
    s_mov_b32 s74, 0
    """)
    a.label('L_ch_mpoll')
    for q in range(4):
        a(f's_add_u32 s68, s67, {q*20*8192}')
        for i in range(8):
            a(f'buffer_load_dwordx4 v[{32+32*q+4*i}:{35+32*q+4*i}], v{6 + i//4}, s[24:27], s68 offen offset:{(i%4)*1024} sc1')
    a('s_waitcnt vmcnt(0)')
    anysent(list(range(32, 160)), TMP + 1)
    a(f"""
    s_add_u32 s74, s74, 1
    s_cmp_ge_u32 s74, {SPIN_MAX}
    s_cbranch_scc1 L_ch_done
    s_cbranch_vccz L_ch_mok
    s_sleep 16
    s_branch L_ch_mpoll
    """)
    a.label('L_ch_mok')
    a(f"""
    s_sub_u32 s66, s62, 1
    v_mov_b32 v25, s66
    s_mov_b64 exec, 1
    buffer_store_dword v25, v24, s[92:95], 0 offen sc1
    s_mov_b64 exec, -1
    s_add_u32 s62, s62, 1
    s_cmp_lt_u32 s62, {NSEG}
    s_cbranch_scc1 L_ch_mstep
    v_lshlrev_b32 v6, 3, v2
    v_add_u32 v6, 256, v6
    s_mov_b32 s74, 0
    """)
    a.label('L_ch_mlast')
    a(f"""
    buffer_load_dwordx2 v[32:33], v6, s[92:95], 0 offen sc1
    s_waitcnt vmcnt(0)
    v_min_u32 v32, v32, v33
    v_cmp_gt_u32 vcc, {NSEG}, v32
    s_add_u32 s74, s74, 1
    s_cmp_ge_u32 s74, {SPIN_MAX}
    s_cbranch_scc1 L_ch_done
    s_cbranch_vccnz L_ch_mlast
    v_mov_b32 v25, {NSEG}
    s_mov_b64 exec, 1
    buffer_store_dword v25, v24, s[92:95], 0 offen sc1
    s_mov_b64 exec, -1
    s_branch L_ch_done
    """)
    a.label('L_ch_done')
    if os.environ.get('ENDSTAMP'):
        a('s_cmp_ge_u32 s2, 256')
        a('s_cbranch_scc1 L_ch_done2')
        srd(a, 76, 4, 1 << 20, WS_USED)
        a('s_memrealtime s[80:81]')
        a('s_waitcnt lgkmcnt(0)')
        a('v_mov_b32 v30, s80')
        a('v_mov_b32 v31, s81')
        a('s_lshl_b32 s43, s2, 3')
        a('v_mov_b32 v1, s43')
        a('s_mov_b64 exec, 1')
        a('buffer_store_dwordx2 v[30:31], v1, s[76:79], 0 offen')
        a.label('L_ch_done2')
    a('s_endpgm')
    return name, kernel_desc(name, 512, accum=256), (NWG, 256, LDS_BYTES)
```
